```python
import torch

def _softmax(x, axis=-1):
    return torch.softmax(x, dim=axis)
def _gelu(x):
    return torch.nn.functional.gelu(x, approximate="tanh")
def _silu(x):
    return torch.nn.functional.silu(x)
def _sigmoid(x):
    return torch.sigmoid(x)
def _layernorm(x, axis=-1, eps=1e-5):
    m = x.mean(dim=axis, keepdim=True)
    v = x.var(dim=axis, keepdim=True, unbiased=False)
    return (x - m) / torch.sqrt(v + eps)
def _scatter_add(tgt, idx, src, axis=0):
    return tgt.clone().index_add_(axis, idx, src)
def _segment_sum(src, seg, n):
    out = torch.zeros((n,) + src.shape[1:], dtype=src.dtype)
    return out.index_add_(0, seg, src)
def _pad(x, pw):
    flat = tuple(v for pair in reversed(pw) for v in pair)
    return torch.nn.functional.pad(x, flat)

kernel_name = 'concat_heads__sliding_block_cached__sliding_block_cached__decode'

def setup_inputs():

    _w = (lambda a: (lambda t: t.to(torch.bfloat16) if t.is_floating_point() else t)(torch.as_tensor(a)))
    def _A_setup():
        B, Sq, D = 2, 1, 576
        Hq, Hkv, Sk, Dh = 32, 16, 8192, 128
        assert Hq % Hkv == 0, (Hq, Hkv)
        return {
            "x": _w((lambda *s: torch.randn(*s, dtype=torch.bfloat16) * 0.8)(B, Sq, D)),
            "k_cache": _w((lambda *s: torch.randn(*s, dtype=torch.bfloat16) * 0.8)(B, Hkv, Sk, Dh)),
            "v_cache": _w((lambda *s: torch.randn(*s, dtype=torch.bfloat16) * 0.05)(B, Hkv, Sk, Dh)),
            "wq": _w((lambda *s: torch.randn(*s, dtype=torch.bfloat16) * 0.8)(D, Hq * Dh) * (D ** -0.5)),
            "wo": _w((lambda *s: torch.randn(*s, dtype=torch.bfloat16) * 0.05)(Hq * Dh, D) * ((Hq * Dh) ** -0.5)),
        }
    _A_in = _A_setup()

    def _B_setup():
        B, Sq, D = 2, 1, 576
        Hq, Hkv, Sk, Dh = 32, 16, 8192, 128
        assert Hq % Hkv == 0, (Hq, Hkv)
        return {
            "x": _w((lambda *s: torch.randn(*s, dtype=torch.bfloat16) * 0.8)(B, Sq, D)),
            "k_cache": _w((lambda *s: torch.randn(*s, dtype=torch.bfloat16) * 0.8)(B, Hkv, Sk, Dh)),
            "v_cache": _w((lambda *s: torch.randn(*s, dtype=torch.bfloat16) * 0.05)(B, Hkv, Sk, Dh)),
            "wq": _w((lambda *s: torch.randn(*s, dtype=torch.bfloat16) * 0.8)(D, Hq * Dh) * (D ** -0.5)),
            "wo": _w((lambda *s: torch.randn(*s, dtype=torch.bfloat16) * 0.05)(Hq * Dh, D) * ((Hq * Dh) ** -0.5)),
        }
    _B_in = _B_setup()

    return {
        "A_x": _A_in["x"],
        "A_k_cache": _A_in["k_cache"],
        "A_v_cache": _A_in["v_cache"],
        "A_wq": _A_in["wq"],
        "A_wo": _A_in["wo"],
        "B_x": _B_in["x"],
        "B_k_cache": _B_in["k_cache"],
        "B_v_cache": _B_in["v_cache"],
        "B_wq": _B_in["wq"],
        "B_wo": _B_in["wo"],
    }

def reference(A_x, A_k_cache, A_v_cache, A_wq, A_wo, B_x, B_k_cache, B_v_cache, B_wq, B_wo):
    def _A_ref(x, k_cache, v_cache, wq, wo):
        B, Sq, D = x.shape
        Hq, Dh = 32, 128
        Hkv, Sk = k_cache.shape[1], k_cache.shape[2]
        W = min(4096, max(256, Sk // 4))
        rep = Hq // Hkv
        q = (lambda x, *d: x.permute(*d))((x @ wq).reshape(B, Sq, Hq, Dh), 0, 2, 1, 3)
        k = (lambda x, n, axis: torch.repeat_interleave(x, n, dim=axis))(k_cache[:, :, Sk - W:, :], rep, axis=1)
        v = (lambda x, n, axis: torch.repeat_interleave(x, n, dim=axis))(v_cache[:, :, Sk - W:, :], rep, axis=1)
        scores = torch.einsum("bhqd,bhkd->bhqk", q, k) * (Dh ** -0.5)
        p = _softmax(scores, axis=-1)
        o = torch.einsum("bhqk,bhkd->bhqd", p, v)
        return (lambda x, *d: x.permute(*d))(o, 0, 2, 1, 3).reshape(B, Sq, Hq * Dh) @ wo

    def _B_ref(x, k_cache, v_cache, wq, wo):
        B, Sq, D = x.shape
        Hq, Dh = 32, 128
        Hkv, Sk = k_cache.shape[1], k_cache.shape[2]
        W = min(4096, max(256, Sk // 4))
        rep = Hq // Hkv
        q = (lambda x, *d: x.permute(*d))((x @ wq).reshape(B, Sq, Hq, Dh), 0, 2, 1, 3)
        k = (lambda x, n, axis: torch.repeat_interleave(x, n, dim=axis))(k_cache[:, :, Sk - W:, :], rep, axis=1)
        v = (lambda x, n, axis: torch.repeat_interleave(x, n, dim=axis))(v_cache[:, :, Sk - W:, :], rep, axis=1)
        scores = torch.einsum("bhqd,bhkd->bhqk", q, k) * (Dh ** -0.5)
        p = _softmax(scores, axis=-1)
        o = torch.einsum("bhqk,bhkd->bhqd", p, v)
        return (lambda x, *d: x.permute(*d))(o, 0, 2, 1, 3).reshape(B, Sq, Hq * Dh) @ wo

    a = _A_ref(A_x, A_k_cache, A_v_cache, A_wq, A_wo)
    b = _B_ref(B_x, B_k_cache, B_v_cache, B_wq, B_wo)
    return torch.concatenate([a, b], axis=-1)
```

```python
import re

TRANS = ("v_exp_f32", "v_log_f32", "v_rcp_f32", "v_rsq_f32", "v_sqrt_f32", "v_sin_f32", "v_cos_f32")

def regs_of(tok):
    tok = tok.strip()
    neg = tok.lstrip("-")
    if neg.startswith("abs(") and neg.endswith(")"): neg = neg[4:-1]
    m = re.fullmatch(r"([vsa])(\d+)", neg)
    if m: return [(m.group(1), int(m.group(2)))]
    m = re.fullmatch(r"([vsa])\[(\d+):(\d+)\]", neg)
    if m: return [(m.group(1), i) for i in range(int(m.group(2)), int(m.group(3)) + 1)]
    if neg == "vcc": return [("s", "vcc")]
    if neg == "exec": return [("s", "exec")]
    return []

class Rec:
    __slots__ = ("kind", "w", "r", "text", "dpp", "trans", "perm", "srcA", "srcB", "srcC", "dppsrc", "store_data", "sw", "sr", "states")

def parse(text):
    t = text.split(";")[0].strip()
    m = re.match(r"(\S+)\s*(.*)", t)
    op, rest = m.group(1), m.group(2)
    ops = [x.strip() for x in re.split(r",(?![^\[]*\])", rest)] if rest else []
    mods = ""
    if ops:
        parts = ops[-1].split(None, 1)
        ops[-1] = parts[0] if parts else ""
        mods = parts[1] if len(parts) > 1 else ""
    r = Rec()
    r.text = text; r.dpp = False; r.trans = False; r.perm = False
    r.w = []; r.r = []; r.srcA = []; r.srcB = []; r.srcC = []; r.dppsrc = []; r.store_data = []; r.sw = []; r.sr = []
    r.states = 1
    R = [regs_of(o) for o in ops]
    def V(x): return [a for a in x if a[0] in "va"]
    def S(x): return [a for a in x if a[0] == "s"]
    if op == "s_nop":
        r.kind = "nop"; r.states = int(ops[0], 0) + 1
    elif op.startswith("v_mfma"):
        r.kind = "mfma"; r.w = V(R[0]); r.srcA = V(R[1]); r.srcB = V(R[2]); r.srcC = V(R[3]); r.r = r.srcA + r.srcB + r.srcC
    elif op.startswith("v_"):
        r.kind = "valu"
        base = re.sub(r"_(e32|e64|dpp|sdwa)$", "", op)
        r.trans = base in TRANS
        r.dpp = ("row_" in mods) or ("quad_perm" in mods)
        if base.startswith("v_permlane"):
            r.perm = True; r.w = V(R[0]) + V(R[1]); r.r = list(r.w)
        elif base.startswith("v_cmp"):
            r.sw = S(R[0]); r.r = sum((V(x) for x in R[1:]), []); r.sr = sum((S(x) for x in R[1:]), [])
        elif base in ("v_readfirstlane_b32", "v_readlane_b32"):
            r.sw = S(R[0]); r.r = V(R[1]); r.kind = "valu"; r.perm = False
            r.trans = False
            r.sr = sum((S(x) for x in R[2:]), [])
            r.dppsrc = []
            r.text = text
            r.kind = "readlane"
        else:
            r.w = V(R[0]); r.r = sum((V(x) for x in R[1:]), []); r.sr = sum((S(x) for x in R[1:]), [])
            if base in ("v_add_co_u32", "v_addc_co_u32", "v_sub_co_u32"):
                r.sw = S(R[1]); r.sr = sum((S(x) for x in R[2:]), [])
            if base.startswith("v_cndmask") and len(ops) == 4: pass
            if base in ("v_fmac_f32", "v_dot2c_f32_bf16") or r.dpp: r.r = r.r + r.w
            if r.dpp: r.dppsrc = V(R[1])
    elif op.startswith("buffer_") or op.startswith("global_"):
        r.kind = "vmem"
        if "load" in op:
            r.w = V(R[0]); r.r = sum((V(x) for x in R[1:]), []); r.sr = sum((S(x) for x in R[1:]), [])
        else:
            r.r = sum((V(x) for x in R), []); r.sr = sum((S(x) for x in R), [])
            if op.endswith("x4") or op.endswith("x3"):
                r.store_data = V(R[0]) if op.startswith("buffer_") else V(R[1])
    elif op.startswith("ds_"):
        r.kind = "ds"
        if op.startswith("ds_read") or op.startswith("ds_bpermute") or op.startswith("ds_swizzle"):
            r.w = V(R[0]); r.r = sum((V(x) for x in R[1:]), [])
        else:
            r.r = sum((V(x) for x in R), [])
    else:
        r.kind = "salu"
        if ops and not op.startswith(("s_cmp", "s_cbranch", "s_branch", "s_waitcnt", "s_barrier", "s_endpgm", "s_setprio")):
            r.sw = S(R[0])
        r.sr = sum((S(x) for x in R[1:]), [])
    return r

def need(prev, cur):
    n = 0
    pw = set(prev.w); cr = set(cur.r); cw = set(cur.w)
    if prev.kind == "valu":
        if pw:
            if cur.kind == "valu" and cur.dpp and pw & set(cur.dppsrc): n = max(n, 2)
            if cur.kind == "valu" and cur.perm and pw & cr: n = max(n, 2)
            if cur.kind == "mfma" and pw & cr: n = max(n, 2)
            if cur.kind == "readlane" and pw & cr: n = max(n, 1)
            if prev.trans and cur.kind in ("valu",) and not cur.trans and pw & (cr | cw): n = max(n, 1)
            if prev.trans and cur.kind == "valu" and cur.trans and pw & cr: n = max(n, 1)
    if prev.kind in ("valu", "readlane") and prev.sw:
        sw = set(prev.sw)
        if cur.kind in ("valu", "readlane") and sw & set(cur.sr): n = max(n, 2)
        if cur.kind == "valu" and "cndmask" in cur.text and ("s", "vcc") in sw: n = max(n, 2)
        if cur.kind == "vmem" and sw & set(cur.sr): n = max(n, 5)
        if cur.kind == "salu" and sw & set(cur.sr): n = max(n, 1)
    if prev.kind == "mfma":
        if cur.kind == "mfma":
            if pw & (set(cur.srcA) | set(cur.srcB)): n = max(n, 8)
            if pw & set(cur.srcC):
                if list(prev.w) == list(cur.srcC): pass
                else: n = max(n, 6)
            if pw & cw and list(prev.w) != list(cur.srcC): n = max(n, 8)
        else:
            if pw & (cr | cw): n = max(n, 8)
        if cur.kind in ("valu", "readlane") and set(prev.srcC) & cw: n = max(n, 3)
    if prev.kind == "vmem" and prev.store_data:
        if set(prev.store_data) & cw: n = max(n, 2)
    return n

class Asm:
    def __init__(self):
        self.lines = []
        self.hist = [[]]
        self.pending = {}
        self.nops = 0
    def raw(self, s):
        self.lines.append(s)
    def _pad(self, rec):
        pad = 0
        for h in self.hist:
            d = 0
            for p in reversed(h):
                n = need(p, rec)
                if n > d: pad = max(pad, n - d)
                d += p.states
                if d > 20: break
        return pad
    def __call__(self, text):
        for t in text.strip().split("\n"):
            t = t.strip()
            if not t: continue
            if t.startswith(";"):
                self.lines.append("    " + t); continue
            rec = parse(t)
            pad = self._pad(rec)
            while pad > 0:
                k = min(pad, 16)
                nr = parse("s_nop %d" % (k - 1))
                self.lines.append("    s_nop %d" % (k - 1)); self.nops += 1
                for h in self.hist: h.append(nr)
                pad -= k
            self.lines.append("    " + t)
            for h in self.hist:
                h.append(rec)
                if len(h) > 40: del h[:-40]
            op = t.split()[0]
            if op.startswith("s_cbranch") or op == "s_branch":
                lab = t.split()[1]
                self.pending.setdefault(lab, []).extend([list(h) for h in self.hist])
                if op == "s_branch": self.hist = []
            if op == "s_endpgm": self.hist = []
    def label(self, name):
        self.lines.append(name + ":")
        hs = self.hist + self.pending.pop(name, [])
        uniq = {}
        for h in hs: uniq[tuple(id(x) for x in h[-24:])] = h
        self.hist = list(uniq.values()) or [[]]
    def text(self):
        return "\n".join(self.lines) + "\n"

class VM:
    def __init__(self, a):
        self.a = a; self.ops = []
    def issue(self, name, text):
        self.a(text); self.ops.append(name)
    def wait(self, name):
        i = len(self.ops) - 1 - self.ops[::-1].index(name)
        n = len(self.ops) - 1 - i
        assert n <= 63
        self.a("s_waitcnt vmcnt(%d)" % n)
        self.ops = self.ops[i + 1:]
    def done(self, name):
        return name not in self.ops
    def wait_all(self):
        self.a("s_waitcnt vmcnt(0)"); self.ops = []
```

```python
import sys
from asmlib import Asm, VM

KN = "concat_heads__sliding_block_cached__sliding_block_cached__decode_kernel"

HEADER = """; Fused decode step for two independent branches (A, B), one launch, 256 workgroups of 8 waves (one per CU).
; Kernarg (ptrs): 0 A_x 8 A_k 16 A_v 24 A_wq 32 A_wo 40 B_x 48 B_k 56 B_v 64 B_wq 72 B_wo 80 out 88 debug 96 ws
"""

WS_BYTES = 287314432
WS_Q = 0x10000
WS_A = 0x50000
WS_B = 0xD0000
BSTRIDE = 5120
STAMP_OFF = 0x10000000
OOB = 0x80000000
L_RED1 = 0
L_RED2 = 8192
L_QB = 16384
L_MX = 16896
L_LS = 16960
L_PB = 17024
L_FIN = 17536
LDS_BYTES = 18432

sW = 3
sBETA = 4; sKO = 5; sMM = 6; sKVH = 7
sG = 8
sT0 = 9; sT1 = 10; sT2 = 11; sT3 = 12
sEP = 13; sTAG = 14; sCNT = 15
sMASK = 16
sC = 17
sRHO = 18; sRP = 19
sOFF = 20; sOFF2 = 21
sX = 24; sK = 28; sV = 32; sWQ = 36; sWO = 40; sWS = 44; sOUT = 48; sCODE = 52
sSTAMP = 60
def srd(b): return "s[%d:%d]" % (b, b + 3)
def sp(b): return "s[%d:%d]" % (b, b + 1)

vL = 0
vKoff = 1; vVoff = 2; vWQoff = 3; vWQ5 = 4; vWOoff = 5; vXoff = 6
vE16 = 7; vEM = 8; vQG = 9; vQP = 10; vCD = 11
vX0 = 12; vX1 = 13; vTAG = 14; vLA = 15
vOH = [16, 20]
vACC = 24
vQB = 28
vS = 32
vT = 36
vKR = 64
vVR = 128
vG = 192
vR = 208
vDUM = 240
vM = 244; vLS = 245; vA1 = 246; vA2 = 247; vA3 = 248; vPM = 249; vPL = 250

def vr(b, n=4): return "v[%d:%d]" % (b, b + n - 1)

def ror(dst_bank, src_bank):
    n = (4 * (dst_bank - src_bank)) % 16
    return "quad_perm:[0,1,2,3]" if n == 0 else "row_ror:%d" % n

def gen(W=4, XB=2, GK=8, ldflags="nt", stamps=False, limit=200000, codepf=True, cflags="sc1", prio=False):
    a = Asm(); vm = VM(a)
    nst = [0]
    stamp_regs = []
    def stamp(name):
        if not stamps: return
        r = sSTAMP + 2 * nst[0]; nst[0] += 1
        assert r + 1 <= 99
        stamp_regs.append((name, r))
        a("s_memrealtime %s" % sp(r))
    def flush_stamps(first_idx, names=None):
        if not stamps: return
        a("s_waitcnt lgkmcnt(0)")
        a("s_lshl_b32 s%d, s2, 8" % sT0)
        a("s_add_u32 s%d, s%d, 0x%x" % (sT0, sT0, STAMP_OFF))
        a("v_mov_b32 v%d, s%d" % (vT, sT0))
        a("v_cmp_ne_u32 vcc, 0, v%d" % vL)
        a("v_mov_b32 v%d, 0x%x" % (vT + 1, OOB))
        a("v_cndmask_b32 v%d, v%d, v%d, vcc" % (vT, vT, vT + 1))
        idx = first_idx
        for (nm, r) in stamp_regs:
            if names is not None and nm not in names: continue
            a("v_mov_b32 v%d, s%d" % (vT + 2, r)); a("v_mov_b32 v%d, s%d" % (vT + 3, r + 1))
            a("buffer_store_dwordx2 %s, v%d, %s, 0 offen offset:%d" % (vr(vT + 2, 2), vT, srd(sWS), 8 * idx))
            a("s_nop 1")
            idx += 1
        assert idx <= 32

    a.raw(HEADER.rstrip())
    a.raw("; @launch grid=(256,1,1) block=(512,1,1) lds=%d" % LDS_BYTES)
    a.raw('.amdgcn_target "amdgcn-amd-amdhsa--gfx950"')
    a.raw(".text"); a.raw(".globl " + KN); a.raw(".p2align 8"); a.raw(".type %s,@function" % KN)
    a.raw(KN + ":")
    a.label("L_begin")
    a("s_cmp_ge_u32 s2, 256")
    a("s_cbranch_scc1 L_end")
    if stamps:
        for r_ in range(sSTAMP + 2, 100, 2): a("s_mov_b64 %s, 0" % sp(r_))
        a("s_memrealtime %s" % sp(sSTAMP)); stamp_regs.append(("start", sSTAMP)); nst[0] = 1
    a("s_bfe_u32 s%d, s2, 0x10004" % sBETA)
    a("s_mul_i32 s%d, s%d, 40" % (sKO, sBETA))
    a("s_load_dwordx2 %s, s[0:1], s%d" % (sp(sX), sKO))
    a("s_load_dwordx2 %s, s[0:1], s%d offset:24" % (sp(sWQ), sKO))
    a("s_load_dwordx2 %s, s[0:1], s%d offset:8" % (sp(sK), sKO))
    a("s_load_dwordx2 %s, s[0:1], s%d offset:16" % (sp(sV), sKO))
    a("s_load_dwordx2 %s, s[0:1], s%d offset:32" % (sp(sWO), sKO))
    a("s_load_dwordx2 %s, s[0:1], 96" % sp(sWS))
    a("s_load_dwordx2 %s, s[0:1], 80" % sp(sOUT))
    a("v_lshrrev_b32 v%d, 6, v0" % vT)
    a("v_and_b32 v%d, 63, v0" % vL)
    a("v_readfirstlane_b32 s%d, v%d" % (sW, vT))
    a("s_lshr_b32 s%d, s2, 5" % sMM)
    a("s_and_b32 s%d, s2, 15" % sKVH)
    a("s_and_b32 s%d, s2, 31" % sG)
    for (b, n) in ((sX, 2304), (sWQ, 0x480000), (sK, 0x4000000), (sV, 0x4000000), (sWO, 0x480000), (sWS, WS_BYTES), (sOUT, 4608)):
        a("s_mov_b32 s%d, 0x%x" % (b + 2, n)); a("s_mov_b32 s%d, 0x20000" % (b + 3))
    vg = vT; vn = vT + 1; vbank = vT + 2; vhb = vT + 3; ve = vT + 4; vt0 = vT + 5; vt1 = vT + 6
    a("v_lshrrev_b32 v%d, 4, v%d" % (vg, vL))
    a("v_and_b32 v%d, 15, v%d" % (vn, vL))
    a("v_bfe_u32 v%d, v%d, 2, 2" % (vbank, vL))
    a("v_bfe_u32 v%d, v%d, 1, 1" % (vhb, vL))
    a("v_and_b32 v%d, 1, v%d" % (ve, vL))
    a("s_and_b32 s%d, s%d, 3" % (sT0, sMM))
    a("s_mul_i32 s%d, s%d, 144" % (sT1, sT0))
    a("s_lshl_b32 s%d, s%d, 2" % (sT2, sW))
    a("s_add_u32 s%d, s%d, s%d" % (sT1, sT1, sT2))
    a("v_mul_u32_u24 v%d, 576, v%d" % (vt0, vhb))
    a("v_lshl_add_u32 v%d, v%d, 5, v%d" % (vt0, vbank, vt0))
    a("v_add3_u32 v%d, v%d, v%d, s%d" % (vt0, vt0, vg, sT1))
    a("v_lshlrev_b32 v%d, 1, v%d" % (vXoff, vt0))
    a("s_lshr_b32 s%d, s%d, 2" % (sT2, sMM))
    a("s_lshl_b32 s%d, s%d, 1" % (sT3, sKVH))
    a("s_add_u32 s%d, s%d, s%d" % (sT3, sT3, sT2))
    a("s_lshl_b32 s%d, s%d, 8" % (sT3, sT3))
    a("v_add_u32 v%d, s%d, v%d" % (vt0, sT1, vg))
    a("v_lshlrev_b32 v%d, 13, v%d" % (vt0, vt0))
    a("v_lshl_add_u32 v%d, v%d, 4, v%d" % (vt0, vn, vt0))
    a("v_add_u32 v%d, s%d, v%d" % (vWQoff, sT3, vt0))
    a("s_waitcnt lgkmcnt(0)")
    stamp("karg")
    vm.issue("x0", "buffer_load_ushort v%d, v%d, %s, 0 offen" % (vX0, vXoff, srd(sX)))
    vm.issue("x1", "buffer_load_ushort v%d, v%d, %s, 0 offen offset:256" % (vX1, vXoff, srd(sX)))

    seq = [("wq", i) for i in range(5)] + [("K", i) for i in range(16)] + [("V", i) for i in range(16)] + [("wo", i) for i in range(8)]
    pos = [0]
    WOROW = [0, 4, 16, 20, 8, 12, 24, 28]
    def issue_next():
        if pos[0] >= len(seq): return False
        kind, i = seq[pos[0]]; pos[0] += 1
        nm = "%s%d" % (kind, i)
        if kind == "wq":
            so = "0"
            if i:
                a("s_mov_b32 s%d, 0x%x" % (sOFF, i * 0x40000)); so = "s%d" % sOFF
            vm.issue(nm, "buffer_load_dwordx4 %s, v%d, %s, %s offen %s" % (vr(vVR + 4 * i), vWQ5 if i == 4 else vWQoff, srd(sWQ), so, ldflags))
        elif kind in ("K", "V"):
            so = "0"
            if i >> 2:
                a("s_movk_i32 s%d, 0x%x" % (sOFF, (i >> 2) * 4096)); so = "s%d" % sOFF
            base = vKR if kind == "K" else vVR
            vm.issue(nm, "buffer_load_dwordx4 %s, v%d, %s, %s offen offset:%d %s" % (vr(base + 4 * i), vKoff if kind == "K" else vVoff,
                     srd(sK if kind == "K" else sV), so, (i & 3) * 1024, ldflags))
        else:
            so = "0"
            off = WOROW[i] * 1152
            if off:
                a("s_movk_i32 s%d, 0x%x" % (sOFF, off)); so = "s%d" % sOFF
            vm.issue(nm, "buffer_load_dwordx4 %s, v%d, %s, %s offen %s" % (vr(vKR + 4 * i), vWOoff, srd(sWO), so, ldflags))
        return True
    for _ in range(min(W, 4)): issue_next()
    a("s_lshl_b32 s%d, s%d, 8" % (sT3, sBETA))
    a("s_load_dword s%d, %s, s%d" % (sEP, sp(sWS), sT3))
    a("s_lshl_b32 s%d, s%d, 4" % (sT3, sT2))
    a("s_add_u32 s%d, s%d, s%d" % (sT3, sT3, sKVH))
    a("s_lshl_b32 s%d, s%d, 21" % (sT3, sT3))
    a("s_lshl_b32 s%d, s%d, 17" % (sT0, sT0))
    a("s_add_u32 s%d, s%d, s%d" % (sT3, sT3, sT0))
    a("s_lshl_b32 s%d, s%d, 14" % (sT0, sW))
    a("s_add_u32 s%d, s%d, s%d" % (sT3, sT3, sT0))
    a("s_add_u32 s%d, s%d, 0x180000" % (sT3, sT3))
    a("v_lshlrev_b32 v%d, 4, v%d" % (vLA, vL))
    a("v_add_u32 v%d, s%d, v%d" % (vVoff, sT3, vLA))
    a("v_and_b32 v%d, 3, v%d" % (vt0, vL))
    a("v_lshlrev_b32 v%d, 4, v%d" % (vt0, vt0))
    a("v_lshl_add_u32 v%d, v%d, 6, v%d" % (vt0, vg, vt0))
    a("v_lshl_add_u32 v%d, v%d, 8, v%d" % (vt0, vbank, vt0))
    a("v_add_u32 v%d, s%d, v%d" % (vKoff, sT3, vt0))
    a("s_cmp_lt_u32 s%d, 4" % sW)
    a("s_cselect_b32 s%d, 0, 0x%x" % (sT0, OOB))
    a("v_add_u32 v%d, s%d, v%d" % (vWQ5, sT0, vWQoff))
    while pos[0] < W: issue_next()
    if codepf:
        a("s_getpc_b64 %s" % sp(sCODE))
        a.label("L_pc")
        a("s_sub_u32 s%d, s%d, L_pc-L_begin" % (sCODE, sCODE))
        a("s_subb_u32 s%d, s%d, 0" % (sCODE + 1, sCODE + 1))
        a("s_mov_b32 s%d, L_codeend-L_begin" % (sCODE + 2))
        a("s_mov_b32 s%d, 0x20000" % (sCODE + 3))
        a("s_cmp_eq_u32 s%d, s%d" % (sW, sMM))
        a("s_cselect_b32 s%d, 0, 0x%x" % (sT0, OOB))
        a("s_lshl_b32 s%d, s%d, 10" % (sT1, sMM))
        a("s_add_u32 s%d, s%d, s%d" % (sT0, sT0, sT1))
        a("v_add_u32 v%d, s%d, v%d" % (vCD, sT0, vLA))
        vm.issue("code", "buffer_load_dwordx4 %s, v%d, %s, 0 offen" % (vr(vDUM), vCD, srd(sCODE)))
    a("s_mov_b32 s%d, 0xfffff000" % sMASK)
    a("s_mov_b32 s%d, 0x3e0293ee" % sC)
    a("v_lshlrev_b32 v%d, 4, v%d" % (vE16, ve))
    a("v_mov_b32 v%d, 0xffff" % vEM)
    a("v_lshlrev_b32 v%d, v%d, v%d" % (vEM, vE16, vEM))
    for s_ in vOH:
        for r in range(4): a("v_mov_b32 v%d, 0" % (s_ + r))
    a("s_lshl_b32 s%d, s%d, 13" % (sT0, sG))
    a("s_add_u32 s%d, s%d, 0x%x" % (sT0, sT0, WS_Q))
    a("s_lshl_b32 s%d, s%d, 10" % (sT1, sMM))
    a("s_add_u32 s%d, s%d, s%d" % (sT1, sT1, sT0))
    a("s_cmp_eq_u32 s%d, 6" % sW)
    a("s_cselect_b32 s%d, s%d, 0x%x" % (sT1, sT1, OOB))
    a("v_lshlrev_b32 v%d, 3, v%d" % (vt0, vg))
    a("v_lshl_add_u32 v%d, v%d, 1, v%d" % (vt0, vbank, vt0))
    a("v_add_u32 v%d, v%d, v%d" % (vt0, vt0, ve))
    a("v_lshlrev_b32 v%d, 4, v%d" % (vt0, vt0))
    a("v_lshl_add_u32 v%d, v%d, 9, v%d" % (vt0, vhb, vt0))
    a("v_add_u32 v%d, s%d, v%d" % (vQP, sT1, vt0))
    a("s_lshr_b32 s%d, s%d, 2" % (sT1, sMM))
    a("s_lshl_b32 s%d, s%d, 9" % (sT1, sT1))
    a("s_add_u32 s%d, s%d, s%d" % (sT1, sT1, sT0))
    a("s_cmp_eq_u32 s%d, 7" % sW)
    a("s_cselect_b32 s%d, s%d, 0x%x" % (sT1, sT1, OOB))
    a("v_lshrrev_b32 v%d, 5, v%d" % (vt0, vL))
    a("v_lshlrev_b32 v%d, 12, v%d" % (vt0, vt0))
    a("v_and_b32 v%d, 31, v%d" % (vt1, vL))
    a("v_lshl_add_u32 v%d, v%d, 4, v%d" % (vt0, vt1, vt0))
    a("v_add_u32 v%d, s%d, v%d" % (vQG, sT1, vt0))
    a("s_lshl_b32 s%d, s%d, 3" % (sRP, sKVH))
    a("s_add_u32 s%d, s%d, s%d" % (sRP, sRP, sMM))
    a("s_mul_i32 s%d, s%d, %d" % (sT0, sRP, 32 * 1152))
    a("s_lshl_b32 s%d, s%d, 8" % (sT1, sW))
    a("s_add_u32 s%d, s%d, s%d" % (sT0, sT0, sT1))
    a("s_cmp_ge_u32 s%d, 5" % sW)
    a("s_cselect_b32 s%d, 0x%x, s%d" % (sT0, OOB, sT0))
    a("v_mul_u32_u24 v%d, 1152, v%d" % (vt0, vg))
    a("v_lshl_add_u32 v%d, v%d, 4, v%d" % (vt0, vn, vt0))
    a("v_add_u32 v%d, s%d, v%d" % (vWOoff, sT0, vt0))
    a("s_cmp_eq_u32 s%d, 4" % sW)
    a("s_cselect_b32 s%d, 8, 16" % sT1)
    a("v_cmp_gt_u32 vcc, s%d, v%d" % (sT1, vn))
    a("v_mov_b32 v%d, 0x%x" % (vt1, OOB))
    a("v_cndmask_b32 v%d, v%d, v%d, vcc" % (vWOoff, vt1, vWOoff))
    a("s_lshl_b32 s%d, s%d, 10" % (sT1, sW))
    a("v_add_u32 v%d, s%d, v%d" % (vA1, sT1, vLA))
    a("s_waitcnt lgkmcnt(0)")
    a("s_add_u32 s%d, s%d, 1" % (sTAG, sEP))
    a("s_and_b32 s%d, s%d, 0xfff" % (sTAG, sTAG))
    a("v_mov_b32 v%d, s%d" % (vTAG, sTAG))

    def build_oh(dst, src, u):
        for r in range(4):
            a("v_mov_b32_dpp v%d, v%d %s row_mask:0xf bank_mask:0x%x" % (dst + r, src, ror(r, u), 1 << r))
    vm.wait("x1")
    a("v_lshlrev_b32 v%d, v%d, v%d" % (vX0, vE16, vX0))
    a("v_lshlrev_b32 v%d, v%d, v%d" % (vX1, vE16, vX1))
    for i in range(5):
        oh = vOH[i & 1]
        build_oh(oh, vX0 if i < 4 else vX1, i & 3)
        vm.wait("wq%d" % i)
        if i == 0: stamp("wq0")
        issue_next()
        a("v_mfma_f32_16x16x32_bf16 %s, %s, %s, %s" % (vr(vACC), vr(vVR + 4 * i), vr(oh), "0" if i == 0 else vr(vACC)))
    stamp("wq4")
    a("ds_write_b128 v%d, %s offset:%d" % (vA1, vr(vACC), L_RED1))
    a("s_waitcnt lgkmcnt(0)")
    a("s_barrier")
    a("s_cmp_lg_u32 s%d, 6" % sW)
    a("s_cbranch_scc1 L_noqred")
    for w in range(8):
        a("ds_read_b128 %s, v%d offset:%d" % (vr(vR + 4 * w), vLA, L_RED1 + 1024 * w))
    a("s_waitcnt lgkmcnt(0)")
    def tree_add(bases, n):
        cur = list(bases)
        while len(cur) > 1:
            nxt = []
            for k in range(0, len(cur) - 1, 2):
                for j in range(0, n, 2):
                    a("v_pk_add_f32 %s, %s, %s" % (vr(cur[k] + j, 2), vr(cur[k] + j, 2), vr(cur[k + 1] + j, 2)))
                nxt.append(cur[k])
            if len(cur) & 1: nxt.append(cur[-1])
            cur = nxt
    tree_add([vR + 4 * w for w in range(8)], 4)
    for r in range(4):
        a("v_and_or_b32 v%d, v%d, s%d, v%d" % (vR + r, vR + r, sMASK, vTAG))
    a.label("L_noqred")
    vm.issue("qpub", "buffer_store_dwordx4 %s, v%d, %s, 0 offen %s" % (vr(vR), vQP, srd(sWS), cflags))
    stamp("qpub")

    for i in range(16):
        vm.wait("K%d" % i)
        issue_next()
        if i == GK:
            for qq in range(4):
                vm.issue("qg%d" % qq, "buffer_load_dwordx4 %s, v%d, %s, 0 offen offset:%d %s" % (vr(vG + 4 * qq), vQG, srd(sWS), 1024 * qq, cflags))
    stamp("K15")
    for _ in range(XB): issue_next()
    a("s_cmp_lg_u32 s%d, 7" % sW)
    a("s_cbranch_scc1 L_noqg")
    a("s_mov_b32 s%d, %d" % (sCNT, limit))
    assert all(vm.done("qg%d" % q) for q in range(4)), "gather must be older than K15"
    a.label("L_qchk")
    for k in range(16): a("v_xor_b32 v%d, v%d, v%d" % (vG + k, vTAG, vG + k))
    a("v_or3_b32 v%d, v%d, v%d, v%d" % (vT, vG, vG + 1, vG + 2))
    for k in range(3, 15, 2): a("v_or3_b32 v%d, v%d, v%d, v%d" % (vT, vT, vG + k, vG + k + 1))
    a("v_or_b32 v%d, v%d, v%d" % (vT, vT, vG + 15))
    a("v_and_b32 v%d, 0xfff, v%d" % (vT, vT))
    a("v_cmp_ne_u32 vcc, 0, v%d" % vT)
    a("s_cbranch_vccz L_qok")
    a("s_sub_u32 s%d, s%d, 1" % (sCNT, sCNT))
    a("s_cbranch_scc1 L_qok")
    for qq in range(4):
        a("buffer_load_dwordx4 %s, v%d, %s, 0 offen offset:%d %s" % (vr(vG + 4 * qq), vQG, srd(sWS), 1024 * qq, cflags))
    a("s_waitcnt vmcnt(0)")
    a("s_branch L_qchk")
    a.label("L_qok")
    tree_add([vG + 4 * q for q in range(4)], 4)
    a("v_lshrrev_b32 v%d, 5, v%d" % (vT, vL))
    a("v_lshlrev_b32 v%d, 8, v%d" % (vT, vT))
    a("v_bfe_u32 v%d, v%d, 3, 2" % (vT + 1, vL))
    a("v_lshl_add_u32 v%d, v%d, 6, v%d" % (vT, vT + 1, vT))
    a("v_and_b32 v%d, 7, v%d" % (vT + 1, vL))
    a("v_lshl_add_u32 v%d, v%d, 1, v%d" % (vT, vT + 1, vT))
    a("v_cvt_pk_bf16_f32 v%d, v%d, v%d" % (vT + 2, vG, vG + 1))
    a("v_cvt_pk_bf16_f32 v%d, v%d, v%d" % (vT + 3, vG + 2, vG + 3))
    a("ds_write_b16 v%d, v%d offset:%d" % (vT, vT + 2, L_QB))
    a("ds_write_b16_d16_hi v%d, v%d offset:%d" % (vT, vT + 2, L_QB + 16))
    a("ds_write_b16 v%d, v%d offset:%d" % (vT, vT + 3, L_QB + 32))
    a("ds_write_b16_d16_hi v%d, v%d offset:%d" % (vT, vT + 3, L_QB + 48))
    a("s_waitcnt lgkmcnt(0)")
    a.label("L_noqg")
    a("v_bfe_u32 v%d, v%d, 1, 1" % (vT, vL))
    a("v_lshlrev_b32 v%d, 8, v%d" % (vT, vT))
    a("v_lshrrev_b32 v%d, 2, v%d" % (vT + 1, vL))
    a("v_lshl_add_u32 v%d, v%d, 4, v%d" % (vT, vT + 1, vT))
    a("s_barrier")
    stamp("qready")
    a("ds_read_b128 %s, v%d offset:%d" % (vr(vQB), vT, L_QB))
    a("v_bfe_u32 v%d, v%d, 1, 1" % (vA2, vL))
    a("v_lshlrev_b32 v%d, 5, v%d" % (vA2, vA2))
    a("s_lshl_b32 s%d, s%d, 2" % (sT0, sW))
    a("v_add_u32 v%d, s%d, v%d" % (vA3, sT0, vA2))
    a("s_waitcnt lgkmcnt(0)")

    def qk_mfma(t):
        for u in range(4):
            k = vKR + 4 * (4 * t + u)
            a("v_mfma_f32_16x16x32_bf16 %s, %s, %s, 0" % (vr(k), vr(k), vr(vQB)))
    def qk_dpp(t):
        for r in range(4):
            for u in range(4):
                k = vKR + 4 * (4 * t + u) + r
                if r == 0:
                    a("v_mov_b32_dpp v%d, v%d %s row_mask:0xf bank_mask:0x%x" % (vS + t, k, ror(u, r), 1 << u))
                else:
                    a("v_add_f32_dpp v%d, v%d, v%d %s row_mask:0xf bank_mask:0x%x" % (vS + t, k, vS + t, ror(u, r), 1 << u))
    qk_mfma(0); qk_mfma(1); qk_dpp(0); qk_mfma(2); qk_dpp(1); qk_mfma(3); qk_dpp(2); qk_dpp(3)
    def rowreduce(op, v, tmp):
        a("v_mov_b32 v%d, v%d" % (tmp, v))
        a("v_permlane16_swap_b32 v%d, v%d" % (v, tmp))
        a("%s v%d, v%d, v%d" % (op, v, v, tmp))
        a("v_mov_b32 v%d, v%d" % (tmp, v))
        a("v_permlane32_swap_b32 v%d, v%d" % (v, tmp))
        a("%s v%d, v%d, v%d" % (op, v, v, tmp))
    def bankreduce(op, v):
        a("%s_dpp v%d, v%d, v%d row_ror:4 row_mask:0xf bank_mask:0xf" % (op, v, v, v))
        a("%s_dpp v%d, v%d, v%d row_ror:8 row_mask:0xf bank_mask:0xf" % (op, v, v, v))
    a("v_max3_f32 v%d, v%d, v%d, v%d" % (vT, vS, vS + 1, vS + 2))
    a("v_max_f32 v%d, v%d, v%d" % (vT, vT, vS + 3))
    bankreduce("v_max_f32", vT)
    rowreduce("v_max_f32", vT, vT + 1)
    a("ds_write_b32 v%d, v%d offset:%d" % (vA3, vT, L_MX))
    a("s_waitcnt lgkmcnt(0)")
    a("s_barrier")
    a("ds_read_b128 %s, v%d offset:%d" % (vr(vT), vA2, L_MX))
    a("ds_read_b128 %s, v%d offset:%d" % (vr(vT + 4), vA2, L_MX + 16))
    a("s_waitcnt lgkmcnt(0)")
    def max8(dst, b):
        a("v_max3_f32 v%d, v%d, v%d, v%d" % (b, b, b + 1, b + 2))
        a("v_max3_f32 v%d, v%d, v%d, v%d" % (b + 3, b + 3, b + 4, b + 5))
        a("v_max3_f32 v%d, v%d, v%d, v%d" % (b, b, b + 6, b + 7))
        a("v_max_f32 v%d, v%d, v%d" % (dst, b, b + 3))
        a("v_mul_f32 v%d, s%d, v%d" % (dst, sC, dst))
        a("v_and_b32 v%d, s%d, v%d" % (dst, sMASK, dst))
    max8(vM, vT)
    for t in range(4): a("v_fma_f32 v%d, v%d, s%d, -v%d" % (vS + t, vS + t, sC, vM))
    for t in range(4): a("v_exp_f32 v%d, v%d" % (vS + t, vS + t))
    a("v_add_f32 v%d, v%d, v%d" % (vT, vS, vS + 1))
    a("v_add_f32 v%d, v%d, v%d" % (vT + 1, vS + 2, vS + 3))
    a("v_add_f32 v%d, v%d, v%d" % (vT, vT, vT + 1))
    for t in range(4):
        a("v_cvt_pk_bf16_f32 v%d, v%d, v%d" % (vS + t, vS + t, vS + t))
    for t in range(4):
        a("v_and_b32 v%d, v%d, v%d" % (vS + t, vEM, vS + t))
    bankreduce("v_add_f32", vT)
    rowreduce("v_add_f32", vT, vT + 1)
    a("ds_write_b32 v%d, v%d offset:%d" % (vA3, vT, L_LS))
    a("s_waitcnt lgkmcnt(0)")
    a("s_barrier")
    stamp("soft")
    a("s_cmp_lt_u32 s%d, 6" % sW)
    a("s_cbranch_scc1 L_nopubprep")
    a("s_sub_u32 s%d, s%d, 6" % (sT0, sW))
    a("s_lshl_b32 s%d, s%d, 5" % (sT1, sT0))
    a("v_mov_b32 v%d, s%d" % (vT + 8, sT1))
    a("ds_read_b128 %s, v%d offset:%d" % (vr(vT), vT + 8, L_MX))
    a("ds_read_b128 %s, v%d offset:%d" % (vr(vT + 4), vT + 8, L_MX + 16))
    a("ds_read_b128 %s, v%d offset:%d" % (vr(vT + 12), vT + 8, L_LS))
    a("ds_read_b128 %s, v%d offset:%d" % (vr(vT + 16), vT + 8, L_LS + 16))
    a("s_waitcnt lgkmcnt(0)")
    max8(vPM, vT)
    a("v_pk_add_f32 %s, %s, %s" % (vr(vT + 12, 2), vr(vT + 12, 2), vr(vT + 14, 2)))
    a("v_pk_add_f32 %s, %s, %s" % (vr(vT + 16, 2), vr(vT + 16, 2), vr(vT + 18, 2)))
    a("v_pk_add_f32 %s, %s, %s" % (vr(vT + 12, 2), vr(vT + 12, 2), vr(vT + 16, 2)))
    a("v_add_f32 v%d, v%d, v%d" % (vPL, vT + 12, vT + 13))
    a("v_or_b32 v%d, v%d, v%d" % (vPM, vTAG, vPM))
    a("v_and_or_b32 v%d, v%d, s%d, v%d" % (vPL, vPL, sMASK, vTAG))
    a("v_lshrrev_b32 v%d, 4, v%d" % (vT, vL))
    a("v_lshlrev_b32 v%d, 4, v%d" % (vT, vT))
    a("v_and_b32 v%d, 1, v%d" % (vT + 1, vL))
    a("v_lshl_add_u32 v%d, v%d, 3, v%d" % (vT, vT + 1, vT))
    a("v_bfe_u32 v%d, v%d, 3, 1" % (vT + 1, vL))
    a("v_lshl_add_u32 v%d, v%d, 2, v%d" % (vT, vT + 1, vT))
    a("v_bfe_u32 v%d, v%d, 2, 1" % (vT + 1, vL))
    a("v_add_u32 v%d, v%d, v%d" % (vT, vT, vT + 1))
    a("s_lshl_b32 s%d, s%d, 1" % (sT1, sT0))
    a("v_add_u32 v%d, s%d, v%d" % (vT, sT1, vT))
    a("v_lshlrev_b32 v%d, 4, v%d" % (vT, vT))
    a("v_bfe_u32 v%d, v%d, 1, 1" % (vT + 1, vL))
    a("v_lshl_add_u32 v%d, v%d, 3, v%d" % (vA2, vT + 1, vT))
    a("s_lshl_b32 s%d, s%d, 14" % (sT1, sG))
    a("s_lshl_b32 s%d, s%d, 11" % (sT2, sMM))
    a("s_add_u32 s%d, s%d, s%d" % (sT1, sT1, sT2))
    a("s_lshl_b32 s%d, s%d, 10" % (sT2, sT0))
    a("s_add_u32 s%d, s%d, s%d" % (sT1, sT1, sT2))
    a("s_add_u32 s%d, s%d, 0x%x" % (sT1, sT1, WS_A))
    a("v_add_u32 v%d, s%d, v%d" % (vA3, sT1, vLA))
    a.label("L_nopubprep")
    a("s_cmp_lg_u32 s%d, 5" % sW)
    a("s_cbranch_scc1 L_nogprep")
    a("s_lshl_b32 s%d, s%d, 14" % (sT1, sG))
    a("s_lshl_b32 s%d, s%d, 8" % (sT2, sMM))
    a("s_add_u32 s%d, s%d, s%d" % (sT1, sT1, sT2))
    a("s_add_u32 s%d, s%d, 0x%x" % (sT1, sT1, WS_A))
    a("v_bfe_u32 v%d, v%d, 1, 1" % (vT, vL))
    a("v_lshlrev_b32 v%d, 2, v%d" % (vT, vT))
    a("v_and_b32 v%d, 1, v%d" % (vT + 1, vL))
    a("v_add_u32 v%d, v%d, v%d" % (vT, vT, vT + 1))
    a("v_lshlrev_b32 v%d, 11, v%d" % (vT, vT))
    a("v_lshrrev_b32 v%d, 2, v%d" % (vT + 1, vL))
    a("v_lshl_add_u32 v%d, v%d, 4, v%d" % (vT, vT + 1, vT))
    a("v_add_u32 v%d, s%d, v%d" % (vA3, sT1, vT))
    a.label("L_nogprep")

    remaining = len(seq) - pos[0]
    per_step = [0] * 16
    nV_left = sum(1 for k, _ in seq[pos[0]:] if k == "V")
    step = 0
    for _ in range(nV_left):
        per_step[step] += 1; step += 1
    wo_steps = 16 - step
    left = 8
    for s_ in range(step, 16):
        c = -(-left // (16 - s_))
        per_step[s_] += c; left -= c
    assert left == 0 and wo_steps > 0
    build_oh(vOH[0], vS, 0)
    for i in range(16):
        oh = vOH[i & 1]
        vm.wait("V%d" % i)
        if i == 15: stamp("V15")
        a("v_mfma_f32_16x16x32_bf16 %s, %s, %s, %s" % (vr(vACC), vr(vVR + 4 * i), vr(oh), "0" if i == 0 else vr(vACC)))
        for _ in range(per_step[i]): issue_next()
        if i < 15: build_oh(vOH[(i + 1) & 1], vS + ((i + 1) >> 2), (i + 1) & 3)
    assert pos[0] == len(seq)
    a("ds_write_b128 v%d, %s offset:%d" % (vA1, vr(vACC), L_RED2))
    a("s_waitcnt lgkmcnt(0)")
    a("s_barrier")
    stamp("barA")
    a("s_cmp_lt_u32 s%d, 5" % sW)
    a("s_cbranch_scc1 L_barB")
    a("s_cmp_eq_u32 s%d, 5" % sW)
    a("s_cbranch_scc1 L_gatherA")
    for w in range(8):
        a("ds_read_b64 %s, v%d offset:%d" % (vr(vR + 2 * w, 2), vA2, L_RED2 + 1024 * w))
    a("s_waitcnt lgkmcnt(0)")
    tree_add([vR + 2 * w for w in range(8)], 2)
    a("v_and_or_b32 v%d, v%d, s%d, v%d" % (vT, vR, sMASK, vTAG))
    a("v_and_or_b32 v%d, v%d, s%d, v%d" % (vT + 1, vR + 1, sMASK, vTAG))
    a("v_mov_b32 v%d, v%d" % (vT + 2, vPM))
    a("v_mov_b32 v%d, v%d" % (vT + 3, vPL))
    a("buffer_store_dwordx4 %s, v%d, %s, 0 offen %s" % (vr(vT), vA3, srd(sWS), cflags))
    stamp("apub")
    a("s_branch L_barB")
    a.label("L_gatherA")
    a("s_mov_b32 s%d, %d" % (sCNT, limit))
    a("s_movk_i32 s%d, 0x1000" % sOFF)
    a.label("L_pollA")
    a("buffer_load_dwordx4 %s, v%d, %s, 0 offen %s" % (vr(vG), vA3, srd(sWS), cflags))
    a("buffer_load_dwordx4 %s, v%d, %s, s%d offen %s" % (vr(vG + 4), vA3, srd(sWS), sOFF, cflags))
    a("s_waitcnt vmcnt(0)")
    for k in range(8): a("v_xor_b32 v%d, v%d, v%d" % (vG + k, vTAG, vG + k))
    a("v_or3_b32 v%d, v%d, v%d, v%d" % (vT, vG, vG + 1, vG + 2))
    a("v_or3_b32 v%d, v%d, v%d, v%d" % (vT + 1, vG + 3, vG + 4, vG + 5))
    a("v_or3_b32 v%d, v%d, v%d, v%d" % (vT, vT, vG + 6, vG + 7))
    a("v_or_b32 v%d, v%d, v%d" % (vT, vT, vT + 1))
    a("v_and_b32 v%d, 0xfff, v%d" % (vT, vT))
    a("v_cmp_ne_u32 vcc, 0, v%d" % vT)
    a("s_cbranch_vccz L_okA")
    a("s_sub_u32 s%d, s%d, 1" % (sCNT, sCNT))
    a("s_cbranch_scc0 L_pollA")
    a.label("L_okA")
    stamp("agot")
    o00, o01, m0, l0, o10, o11, m1, l1 = [vG + k for k in range(8)]
    X1 = "quad_perm:[1,0,3,2] row_mask:0xf bank_mask:0xf"
    a("v_max_f32 v%d, v%d, v%d" % (vT, m0, m1))
    a("v_max_f32_dpp v%d, v%d, v%d %s" % (vT, vT, vT, X1))
    a("v_sub_f32 v%d, v%d, v%d" % (m0, m0, vT))
    a("v_sub_f32 v%d, v%d, v%d" % (m1, m1, vT))
    a("v_exp_f32 v%d, v%d" % (m0, m0))
    a("v_exp_f32 v%d, v%d" % (m1, m1))
    a("v_mul_f32 v%d, v%d, v%d" % (l0, m0, l0))
    a("v_mul_f32 v%d, v%d, v%d" % (o00, m0, o00))
    a("v_mul_f32 v%d, v%d, v%d" % (o01, m0, o01))
    a("v_fmac_f32 v%d, v%d, v%d" % (l0, m1, l1))
    a("v_fmac_f32 v%d, v%d, v%d" % (o00, m1, o10))
    a("v_fmac_f32 v%d, v%d, v%d" % (o01, m1, o11))
    a("v_add_f32_dpp v%d, v%d, v%d %s" % (l0, l0, l0, X1))
    a("v_add_f32_dpp v%d, v%d, v%d %s" % (o00, o00, o00, X1))
    a("v_add_f32_dpp v%d, v%d, v%d %s" % (o01, o01, o01, X1))
    a("v_rcp_f32 v%d, v%d" % (l0, l0))
    a("v_mul_f32 v%d, v%d, v%d" % (o00, l0, o00))
    a("v_mul_f32 v%d, v%d, v%d" % (o01, l0, o01))
    a("v_cvt_pk_bf16_f32 v%d, v%d, v%d" % (vT, o00, o00))
    a("v_cvt_pk_bf16_f32 v%d, v%d, v%d" % (vT + 1, o01, o01))
    a("v_and_b32 v%d, v%d, v%d" % (vT, vEM, vT))
    a("v_and_b32 v%d, v%d, v%d" % (vT + 1, vEM, vT + 1))
    a("v_lshlrev_b32 v%d, 3, v%d" % (vT + 2, vL))
    a("ds_write_b64 v%d, %s offset:%d" % (vT + 2, vr(vT, 2), L_PB))
    a("s_waitcnt lgkmcnt(0)")
    a.label("L_barB")
    a("v_lshlrev_b32 v%d, 3, v%d" % (vT + 2, vL))
    a("s_barrier")
    stamp("barB")
    a("s_cmp_ge_u32 s%d, 5" % sW)
    a("s_cbranch_scc1 L_phase4")
    a("ds_read_b64 %s, v%d offset:%d" % (vr(vS, 2), vT + 2, L_PB))
    a("s_lshl_b32 s%d, s%d, 7" % (sT0, sBETA))
    a("s_add_u32 s%d, s%d, s%d" % (sT0, sT0, sRP))
    a("s_mul_i32 s%d, s%d, %d" % (sT0, sT0, BSTRIDE))
    a("s_add_u32 s%d, s%d, 0x%x" % (sT0, sT0, WS_B))
    a("v_add_u32 v%d, s%d, v%d" % (vA3, sT0, vA1))
    a("s_waitcnt vmcnt(0) lgkmcnt(0)")
    stamp("wo")
    build_oh(vOH[0], vS, 0)
    for i in range(8):
        oh = vOH[i & 1]
        if i < 7: build_oh(vOH[(i + 1) & 1], vS + ((i + 1) >> 2), (i + 1) & 3)
        a("v_mfma_f32_16x16x32_bf16 %s, %s, %s, %s" % (vr(vACC), vr(vKR + 4 * i), vr(oh), "0" if i == 0 else vr(vACC)))
    for r in range(4):
        a("v_and_or_b32 v%d, v%d, s%d, v%d" % (vT + r, vACC + r, sMASK, vTAG))
    a("buffer_store_dwordx4 %s, v%d, %s, 0 offen %s" % (vr(vT), vA3, srd(sWS), cflags))
    stamp("bpub")
    a.label("L_phase4")
    a("s_lshl_b32 s%d, s%d, 4" % (sRHO, sMM))
    a("s_add_u32 s%d, s%d, s%d" % (sRHO, sRHO, sKVH))
    a("s_cmp_ge_u32 s%d, 72" % sRHO)
    a("s_cbranch_scc1 L_exit")
    a("s_lshl_b32 s%d, s%d, 7" % (sT0, sBETA))
    a("s_lshl_b32 s%d, s%d, 4" % (sT1, sW))
    a("s_add_u32 s%d, s%d, s%d" % (sT0, sT0, sT1))
    a("s_mul_i32 s%d, s%d, %d" % (sT0, sT0, BSTRIDE))
    a("s_lshl_b32 s%d, s%d, 6" % (sT1, sRHO))
    a("s_add_u32 s%d, s%d, s%d" % (sT0, sT0, sT1))
    a("s_add_u32 s%d, s%d, 0x%x" % (sT0, sT0, WS_B))
    a("v_lshrrev_b32 v%d, 2, v%d" % (vT + 4, vL))
    a("v_mul_u32_u24 v%d, %d, v%d" % (vT + 4, BSTRIDE, vT + 4))
    a("v_and_b32 v%d, 3, v%d" % (vT + 5, vL))
    a("v_lshl_add_u32 v%d, v%d, 4, v%d" % (vT + 4, vT + 5, vT + 4))
    a("v_add_u32 v%d, s%d, v%d" % (vA2, sT0, vT + 4))
    a("v_lshrrev_b32 v%d, 4, v%d" % (vT + 4, vL))
    a("v_lshl_add_u32 v%d, v%d, 2, v%d" % (vT + 5, vT + 4, vT + 5))
    a("v_lshlrev_b32 v%d, 2, v%d" % (vT + 5, vT + 5))
    a("s_lshl_b32 s%d, s%d, 6" % (sT1, sW))
    a("v_add_u32 v%d, s%d, v%d" % (vT + 6, sT1, vT + 5))
    a("v_bfe_u32 v%d, v%d, 2, 2" % (vT + 7, vL))
    a("v_lshl_add_u32 v%d, v%d, 6, v%d" % (vT + 7, vT + 7, vT + 5))
    a("s_mov_b32 s%d, %d" % (sCNT, limit))
    a.label("L_pollB")
    a("buffer_load_dwordx4 %s, v%d, %s, 0 offen %s" % (vr(vG), vA2, srd(sWS), cflags))
    a("s_waitcnt vmcnt(0)")
    for k in range(4): a("v_xor_b32 v%d, v%d, v%d" % (vG + k, vTAG, vG + k))
    a("v_or3_b32 v%d, v%d, v%d, v%d" % (vT, vG, vG + 1, vG + 2))
    a("v_or_b32 v%d, v%d, v%d" % (vT, vT, vG + 3))
    a("v_and_b32 v%d, 0xfff, v%d" % (vT, vT))
    a("v_cmp_ne_u32 vcc, 0, v%d" % vT)
    a("s_cbranch_vccz L_okB")
    a("s_sub_u32 s%d, s%d, 1" % (sCNT, sCNT))
    a("s_cbranch_scc0 L_pollB")
    a.label("L_okB")
    stamp("bgot")
    a("v_permlane32_swap_b32 v%d, v%d" % (vG, vG + 1))
    a("v_permlane32_swap_b32 v%d, v%d" % (vG + 2, vG + 3))
    a("v_add_f32 v%d, v%d, v%d" % (vG, vG, vG + 1))
    a("v_add_f32 v%d, v%d, v%d" % (vG + 2, vG + 2, vG + 3))
    a("v_permlane16_swap_b32 v%d, v%d" % (vG, vG + 2))
    a("v_add_f32 v%d, v%d, v%d" % (vG, vG, vG + 2))
    bankreduce("v_add_f32", vG)
    a("ds_write_b32 v%d, v%d offset:%d" % (vT + 6, vG, L_FIN))
    a("s_waitcnt lgkmcnt(0)")
    a("s_barrier")
    a("s_cmp_lg_u32 s%d, 0" % sW)
    a("s_cbranch_scc1 L_exit")
    a("ds_read2_b32 %s, v%d offset0:%d offset1:%d" % (vr(vG, 2), vT + 7, 0, 64) if False else
      "ds_read_b32 v%d, v%d offset:%d" % (vG, vT + 7, L_FIN))
    a("ds_read_b32 v%d, v%d offset:%d" % (vG + 1, vT + 7, L_FIN + 256))
    a("s_lshr_b32 s%d, s%d, 4" % (sT0, sRHO))
    a("s_lshl_b32 s%d, s%d, 7" % (sT0, sT0))
    a("s_bfe_u32 s%d, s%d, 0x20002" % (sT1, sRHO))
    a("s_lshl_b32 s%d, s%d, 5" % (sT1, sT1))
    a("s_add_u32 s%d, s%d, s%d" % (sT0, sT0, sT1))
    a("s_and_b32 s%d, s%d, 3" % (sT1, sRHO))
    a("s_lshl_b32 s%d, s%d, 1" % (sT1, sT1))
    a("s_add_u32 s%d, s%d, s%d" % (sT0, sT0, sT1))
    a("s_mul_i32 s%d, s%d, 576" % (sT1, sBETA))
    a("s_add_u32 s%d, s%d, s%d" % (sT0, sT0, sT1))
    a("v_bfe_u32 v%d, v%d, 4, 1" % (vT, vL))
    a("v_lshlrev_b32 v%d, 4, v%d" % (vT, vT))
    a("v_lshrrev_b32 v%d, 5, v%d" % (vT + 1, vL))
    a("v_lshl_add_u32 v%d, v%d, 3, v%d" % (vT, vT + 1, vT))
    a("v_bfe_u32 v%d, v%d, 1, 1" % (vT + 1, vL))
    a("v_mul_u32_u24 v%d, 1152, v%d" % (vT + 1, vT + 1))
    a("v_and_b32 v%d, 1, v%d" % (vT + 2, vL))
    a("v_add3_u32 v%d, v%d, v%d, v%d" % (vT, vT, vT + 1, vT + 2))
    a("v_add_u32 v%d, s%d, v%d" % (vT, sT0, vT))
    a("v_lshlrev_b32 v%d, 1, v%d" % (vT, vT))
    a("v_bfe_u32 v%d, v%d, 2, 2" % (vT + 1, vL))
    a("v_cmp_eq_u32 vcc, 0, v%d" % (vT + 1))
    a("v_mov_b32 v%d, 0x%x" % (vT + 2, OOB))
    a("v_cndmask_b32 v%d, v%d, v%d, vcc" % (vT, vT + 2, vT))
    a("s_waitcnt lgkmcnt(0)")
    a("v_add_f32 v%d, v%d, v%d" % (vG, vG, vG + 1))
    bankreduce("v_add_f32", vG)
    a("v_cvt_pk_bf16_f32 v%d, v%d, v%d" % (vG, vG, vG))
    a("buffer_store_short v%d, v%d, %s, 0 offen" % (vG, vT, srd(sOUT)))
    a("s_cmp_lg_u32 s%d, 0" % sRHO)
    a("s_cbranch_scc1 L_exit")
    a("s_lshl_b32 s%d, s%d, 8" % (sT0, sBETA))
    a("v_mov_b32 v%d, s%d" % (vT + 3, sT0))
    a("v_cmp_eq_u32 vcc, 0, v%d" % vL)
    a("v_cndmask_b32 v%d, v%d, v%d, vcc" % (vT + 3, vT + 2, vT + 3))
    a("buffer_store_dword v%d, v%d, %s, 0 offen %s" % (vTAG, vT + 3, srd(sWS), cflags))
    a.label("L_exit")
    if stamps:
        stamp("end")
        a("s_cmp_eq_u32 s%d, 0" % sW); a("s_cbranch_scc0 L_st5")
        flush_stamps(0, ["start", "karg", "wq0", "wq4", "qpub", "K15", "qready", "soft", "V15", "barA", "barB", "wo", "bpub", "bgot", "end"])
        a("s_branch L_end")
        a.label("L_st5")
        a("s_cmp_eq_u32 s%d, 5" % sW); a("s_cbranch_scc0 L_st6")
        flush_stamps(16, ["agot", "barB", "bgot", "end"])
        a("s_branch L_end")
        a.label("L_st6")
        a("s_cmp_eq_u32 s%d, 6" % sW); a("s_cbranch_scc0 L_end")
        flush_stamps(24, ["qpub", "K15", "V15", "apub", "bgot", "end"])
    a.label("L_end")
    a("s_endpgm")
    a.raw("L_codeend:")
    a.raw('.section .rodata,"a"')
    a.raw(".p2align 6")
    a.raw(".amdhsa_kernel " + KN)
    a.raw("  .amdhsa_next_free_vgpr 256")
    a.raw("  .amdhsa_next_free_sgpr 102")
    a.raw("  .amdhsa_accum_offset 256")
    a.raw("  .amdhsa_group_segment_fixed_size 0")
    a.raw("  .amdhsa_kernarg_size 104")
    a.raw("  .amdhsa_user_sgpr_count 2")
    a.raw("  .amdhsa_user_sgpr_kernarg_segment_ptr 1")
    a.raw("  .amdhsa_system_sgpr_workgroup_id_x 1")
    a.raw(".end_amdhsa_kernel")
    return a.text(), a.nops

if __name__ == "__main__":
    import build, ast
    out = sys.argv[1]
    kw = {}
    for x in sys.argv[2:]:
        k, v = x.split("=", 1)
        try: kw[k] = ast.literal_eval(v)
        except Exception: kw[k] = v
    t, nops = gen(**kw)
    open(out, "w").write(t)
    print("nops inserted:", nops, "lines:", t.count("\n"))
    build.build(out)
```

```python
import sys
from asmlib import Asm, VM

KN = "concat_heads__sliding_block_cached__sliding_block_cached__decode_kernel"

HEADER = """; Fused decode step for two independent branches (A, B), one launch, 256 workgroups of 8 waves (one per CU).
; Kernarg (ptrs): 0 A_x 8 A_k 16 A_v 24 A_wq 32 A_wo 40 B_x 48 B_k 56 B_v 64 B_wq 72 B_wo 80 out 88 debug 96 ws
"""

WS_BYTES = 287314432
WS_Q = 0x10000
WS_A = 0x50000
WS_B = 0xD0000
BSTRIDE = 5120
STAMP_OFF = 0x10000000
OOB = 0x80000000
L_RED1 = 0
L_RED2 = 8192
L_QB = 16384
L_MX = 16896
L_LS = 16960
L_PB = 17024
L_FIN = 17536
LDS_BYTES = 18432

sW = 3
sBETA = 4; sKO = 5; sMM = 6; sKVH = 7
sG = 8
sT0 = 9; sT1 = 10; sT2 = 11; sT3 = 12
sEP = 13; sTAG = 14; sCNT = 15
sMASK = 16
sC = 17
sRHO = 18; sRP = 19
sOFF = 20; sOFF2 = 21
sX = 24; sK = 28; sV = 32; sWQ = 36; sWO = 40; sWS = 44; sOUT = 48; sCODE = 52
sSTAMP = 60
def srd(b): return "s[%d:%d]" % (b, b + 3)
def sp(b): return "s[%d:%d]" % (b, b + 1)

vL = 0
vKoff = 1; vVoff = 2; vWQoff = 3; vWQ5 = 4; vWOoff = 5; vXoff = 6
vE16 = 7; vEM = 8; vQG = 9; vQP = 10; vCD = 11
vX0 = 12; vX1 = 13; vTAG = 14; vLA = 15
vOH = [16, 20]
vACC = 24
vQB = 28
vS = 32
vT = 36
vKR = 64
vVR = 128
vG = 192
vR = 208
vDUM = 240
vM = 244; vLS = 245; vA1 = 246; vA2 = 247; vA3 = 248; vPM = 249; vPL = 250

def vr(b, n=4): return "v[%d:%d]" % (b, b + n - 1)

def ror(dst_bank, src_bank):
    n = (4 * (dst_bank - src_bank)) % 16
    return "quad_perm:[0,1,2,3]" if n == 0 else "row_ror:%d" % n

def gen(W=4, XB=2, GK=8, ldflags="nt", stamps=False, limit=200000, codepf=True, cflags="sc1", prio=False, dbgst=False, dbgwg=0):
    a = Asm(); vm = VM(a)
    nst = [0]
    stamp_regs = []
    def stamp(name):
        if not stamps: return
        r = sSTAMP + 2 * nst[0]; nst[0] += 1
        assert r + 1 <= 99
        stamp_regs.append((name, r))
        a("s_memrealtime %s" % sp(r))
    def flush_dbg(first_idx, names):
        a("s_cmp_lg_u32 s2, %d" % dbgwg); a("s_cbranch_scc1 L_end")
        a("s_load_dwordx2 %s, s[0:1], 88" % sp(sCODE))
        a("s_waitcnt lgkmcnt(0)")
        a("s_mov_b32 s%d, 256" % (sCODE + 2)); a("s_mov_b32 s%d, 0x20000" % (sCODE + 3))
        a("v_cmp_ne_u32 vcc, 0, v%d" % vL)
        a("v_mov_b32 v%d, 0" % vT)
        a("v_mov_b32 v%d, 0x%x" % (vT + 1, OOB))
        a("v_cndmask_b32 v%d, v%d, v%d, vcc" % (vT, vT, vT + 1))
        idx = first_idx
        for nm in names:
            r = dict(stamp_regs)[nm]
            a("s_sub_u32 s%d, s%d, s%d" % (sT0, r, dict(stamp_regs)["start"]))
            a("v_mov_b32 v%d, s%d" % (vT + 2, sT0))
            a("buffer_store_dword v%d, v%d, %s, 0 offen offset:%d" % (vT + 2, vT, srd(sCODE), 4 * idx))
            a("s_nop 1")
            idx += 1
    def flush_stamps(first_idx, names=None):
        if not stamps: return
        if dbgst:
            if first_idx == 0: flush_dbg(0, ["start", "karg", "wq0", "wq4", "K15", "qready", "soft", "V15", "barA", "barB", "bpub", "bgot", "end"])
            return
        a("s_waitcnt lgkmcnt(0)")
        a("s_lshl_b32 s%d, s2, 8" % sT0)
        a("s_add_u32 s%d, s%d, 0x%x" % (sT0, sT0, STAMP_OFF))
        a("v_mov_b32 v%d, s%d" % (vT, sT0))
        a("v_cmp_ne_u32 vcc, 0, v%d" % vL)
        a("v_mov_b32 v%d, 0x%x" % (vT + 1, OOB))
        a("v_cndmask_b32 v%d, v%d, v%d, vcc" % (vT, vT, vT + 1))
        idx = first_idx
        for (nm, r) in stamp_regs:
            if names is not None and nm not in names: continue
            a("v_mov_b32 v%d, s%d" % (vT + 2, r)); a("v_mov_b32 v%d, s%d" % (vT + 3, r + 1))
            a("buffer_store_dwordx2 %s, v%d, %s, 0 offen offset:%d" % (vr(vT + 2, 2), vT, srd(sWS), 8 * idx))
            a("s_nop 1")
            idx += 1
        assert idx <= 32

    a.raw(HEADER.rstrip())
    a.raw("; @launch grid=(256,1,1) block=(512,1,1) lds=%d" % LDS_BYTES)
    a.raw('.amdgcn_target "amdgcn-amd-amdhsa--gfx950"')
    a.raw(".text"); a.raw(".globl " + KN); a.raw(".p2align 8"); a.raw(".type %s,@function" % KN)
    a.raw(KN + ":")
    a.label("L_begin")
    a("s_cmp_ge_u32 s2, 256")
    a("s_cbranch_scc1 L_end")
    if stamps:
        for r_ in range(sSTAMP + 2, 100, 2): a("s_mov_b64 %s, 0" % sp(r_))
        a("s_memrealtime %s" % sp(sSTAMP)); stamp_regs.append(("start", sSTAMP)); nst[0] = 1
    a("s_bfe_u32 s%d, s2, 0x10004" % sBETA)
    a("s_mul_i32 s%d, s%d, 40" % (sKO, sBETA))
    a("s_load_dwordx2 %s, s[0:1], s%d" % (sp(sX), sKO))
    a("s_load_dwordx2 %s, s[0:1], s%d offset:24" % (sp(sWQ), sKO))
    a("s_load_dwordx2 %s, s[0:1], s%d offset:8" % (sp(sK), sKO))
    a("s_load_dwordx2 %s, s[0:1], s%d offset:16" % (sp(sV), sKO))
    a("s_load_dwordx2 %s, s[0:1], s%d offset:32" % (sp(sWO), sKO))
    a("s_load_dwordx2 %s, s[0:1], 96" % sp(sWS))
    a("s_load_dwordx2 %s, s[0:1], 80" % sp(sOUT))
    a("v_lshrrev_b32 v%d, 6, v0" % vT)
    a("v_and_b32 v%d, 63, v0" % vL)
    a("v_readfirstlane_b32 s%d, v%d" % (sW, vT))
    a("s_lshr_b32 s%d, s2, 5" % sMM)
    a("s_and_b32 s%d, s2, 15" % sKVH)
    a("s_and_b32 s%d, s2, 31" % sG)
    for (b, n) in ((sX, 2304), (sWQ, 0x480000), (sK, 0x4000000), (sV, 0x4000000), (sWO, 0x480000), (sWS, WS_BYTES), (sOUT, 4608)):
        a("s_mov_b32 s%d, 0x%x" % (b + 2, n)); a("s_mov_b32 s%d, 0x20000" % (b + 3))
    vg = vT; vn = vT + 1; vbank = vT + 2; vhb = vT + 3; ve = vT + 4; vt0 = vT + 5; vt1 = vT + 6
    a("v_lshrrev_b32 v%d, 4, v%d" % (vg, vL))
    a("v_and_b32 v%d, 15, v%d" % (vn, vL))
    a("v_bfe_u32 v%d, v%d, 2, 2" % (vbank, vL))
    a("v_bfe_u32 v%d, v%d, 1, 1" % (vhb, vL))
    a("v_and_b32 v%d, 1, v%d" % (ve, vL))
    a("s_and_b32 s%d, s%d, 3" % (sT0, sMM))
    a("s_mul_i32 s%d, s%d, 144" % (sT1, sT0))
    a("s_lshl_b32 s%d, s%d, 2" % (sT2, sW))
    a("s_add_u32 s%d, s%d, s%d" % (sT1, sT1, sT2))
    a("v_mul_u32_u24 v%d, 576, v%d" % (vt0, vhb))
    a("v_lshl_add_u32 v%d, v%d, 5, v%d" % (vt0, vbank, vt0))
    a("v_add3_u32 v%d, v%d, v%d, s%d" % (vt0, vt0, vg, sT1))
    a("v_lshlrev_b32 v%d, 1, v%d" % (vXoff, vt0))
    a("s_lshr_b32 s%d, s%d, 2" % (sT2, sMM))
    a("s_lshl_b32 s%d, s%d, 1" % (sT3, sKVH))
    a("s_add_u32 s%d, s%d, s%d" % (sT3, sT3, sT2))
    a("s_lshl_b32 s%d, s%d, 8" % (sT3, sT3))
    a("v_add_u32 v%d, s%d, v%d" % (vt0, sT1, vg))
    a("v_lshlrev_b32 v%d, 13, v%d" % (vt0, vt0))
    a("v_lshl_add_u32 v%d, v%d, 4, v%d" % (vt0, vn, vt0))
    a("v_add_u32 v%d, s%d, v%d" % (vWQoff, sT3, vt0))
    a("s_waitcnt lgkmcnt(0)")
    stamp("karg")
    vm.issue("x0", "buffer_load_ushort v%d, v%d, %s, 0 offen" % (vX0, vXoff, srd(sX)))
    vm.issue("x1", "buffer_load_ushort v%d, v%d, %s, 0 offen offset:256" % (vX1, vXoff, srd(sX)))

    seq = [("wq", i) for i in range(5)] + [("K", i) for i in range(16)] + [("V", i) for i in range(16)] + [("wo", i) for i in range(8)]
    pos = [0]
    WOROW = [0, 4, 16, 20, 8, 12, 24, 28]
    def issue_next():
        if pos[0] >= len(seq): return False
        kind, i = seq[pos[0]]; pos[0] += 1
        nm = "%s%d" % (kind, i)
        if kind == "wq":
            so = "0"
            if i:
                a("s_mov_b32 s%d, 0x%x" % (sOFF, i * 0x40000)); so = "s%d" % sOFF
            vm.issue(nm, "buffer_load_dwordx4 %s, v%d, %s, %s offen %s" % (vr(vVR + 4 * i), vWQ5 if i == 4 else vWQoff, srd(sWQ), so, ldflags))
        elif kind in ("K", "V"):
            so = "0"
            if i >> 2:
                a("s_movk_i32 s%d, 0x%x" % (sOFF, (i >> 2) * 4096)); so = "s%d" % sOFF
            base = vKR if kind == "K" else vVR
            vm.issue(nm, "buffer_load_dwordx4 %s, v%d, %s, %s offen offset:%d %s" % (vr(base + 4 * i), vKoff if kind == "K" else vVoff,
                     srd(sK if kind == "K" else sV), so, (i & 3) * 1024, ldflags))
        else:
            so = "0"
            off = WOROW[i] * 1152
            if off:
                a("s_movk_i32 s%d, 0x%x" % (sOFF, off)); so = "s%d" % sOFF
            vm.issue(nm, "buffer_load_dwordx4 %s, v%d, %s, %s offen %s" % (vr(vKR + 4 * i), vWOoff, srd(sWO), so, ldflags))
        return True
    for _ in range(min(W, 4)): issue_next()
    a("s_lshl_b32 s%d, s%d, 8" % (sT3, sBETA))
    a("s_load_dword s%d, %s, s%d" % (sEP, sp(sWS), sT3))
    a("s_lshl_b32 s%d, s%d, 4" % (sT3, sT2))
    a("s_add_u32 s%d, s%d, s%d" % (sT3, sT3, sKVH))
    a("s_lshl_b32 s%d, s%d, 21" % (sT3, sT3))
    a("s_lshl_b32 s%d, s%d, 17" % (sT0, sT0))
    a("s_add_u32 s%d, s%d, s%d" % (sT3, sT3, sT0))
    a("s_lshl_b32 s%d, s%d, 14" % (sT0, sW))
    a("s_add_u32 s%d, s%d, s%d" % (sT3, sT3, sT0))
    a("s_add_u32 s%d, s%d, 0x180000" % (sT3, sT3))
    a("v_lshlrev_b32 v%d, 4, v%d" % (vLA, vL))
    a("v_add_u32 v%d, s%d, v%d" % (vVoff, sT3, vLA))
    a("v_and_b32 v%d, 3, v%d" % (vt0, vL))
    a("v_lshlrev_b32 v%d, 4, v%d" % (vt0, vt0))
    a("v_lshl_add_u32 v%d, v%d, 6, v%d" % (vt0, vg, vt0))
    a("v_lshl_add_u32 v%d, v%d, 8, v%d" % (vt0, vbank, vt0))
    a("v_add_u32 v%d, s%d, v%d" % (vKoff, sT3, vt0))
    a("s_cmp_lt_u32 s%d, 4" % sW)
    a("s_cselect_b32 s%d, 0, 0x%x" % (sT0, OOB))
    a("v_add_u32 v%d, s%d, v%d" % (vWQ5, sT0, vWQoff))
    while pos[0] < W: issue_next()
    if codepf:
        a("s_getpc_b64 %s" % sp(sCODE))
        a.label("L_pc")
        a("s_sub_u32 s%d, s%d, L_pc-L_begin" % (sCODE, sCODE))
        a("s_subb_u32 s%d, s%d, 0" % (sCODE + 1, sCODE + 1))
        a("s_mov_b32 s%d, L_codeend-L_begin" % (sCODE + 2))
        a("s_mov_b32 s%d, 0x20000" % (sCODE + 3))
        a("s_cmp_eq_u32 s%d, s%d" % (sW, sMM))
        a("s_cselect_b32 s%d, 0, 0x%x" % (sT0, OOB))
        a("s_lshl_b32 s%d, s%d, 10" % (sT1, sMM))
        a("s_add_u32 s%d, s%d, s%d" % (sT0, sT0, sT1))
        a("v_add_u32 v%d, s%d, v%d" % (vCD, sT0, vLA))
        vm.issue("code", "buffer_load_dwordx4 %s, v%d, %s, 0 offen" % (vr(vDUM), vCD, srd(sCODE)))
    a("s_mov_b32 s%d, 0xfffff000" % sMASK)
    a("s_mov_b32 s%d, 0x3e0293ee" % sC)
    a("v_lshlrev_b32 v%d, 4, v%d" % (vE16, ve))
    a("v_mov_b32 v%d, 0xffff" % vEM)
    a("v_lshlrev_b32 v%d, v%d, v%d" % (vEM, vE16, vEM))
    for s_ in vOH:
        for r in range(4): a("v_mov_b32 v%d, 0" % (s_ + r))
    a("s_lshl_b32 s%d, s%d, 13" % (sT0, sG))
    a("s_add_u32 s%d, s%d, 0x%x" % (sT0, sT0, WS_Q))
    a("s_lshl_b32 s%d, s%d, 10" % (sT1, sMM))
    a("s_add_u32 s%d, s%d, s%d" % (sT1, sT1, sT0))
    a("s_cmp_eq_u32 s%d, 6" % sW)
    a("s_cselect_b32 s%d, s%d, 0x%x" % (sT1, sT1, OOB))
    a("v_lshlrev_b32 v%d, 3, v%d" % (vt0, vg))
    a("v_lshl_add_u32 v%d, v%d, 1, v%d" % (vt0, vbank, vt0))
    a("v_add_u32 v%d, v%d, v%d" % (vt0, vt0, ve))
    a("v_lshlrev_b32 v%d, 4, v%d" % (vt0, vt0))
    a("v_lshl_add_u32 v%d, v%d, 9, v%d" % (vt0, vhb, vt0))
    a("v_add_u32 v%d, s%d, v%d" % (vQP, sT1, vt0))
    a("s_lshr_b32 s%d, s%d, 2" % (sT1, sMM))
    a("s_lshl_b32 s%d, s%d, 9" % (sT1, sT1))
    a("s_add_u32 s%d, s%d, s%d" % (sT1, sT1, sT0))
    a("s_cmp_eq_u32 s%d, 7" % sW)
    a("s_cselect_b32 s%d, s%d, 0x%x" % (sT1, sT1, OOB))
    a("v_lshrrev_b32 v%d, 5, v%d" % (vt0, vL))
    a("v_lshlrev_b32 v%d, 12, v%d" % (vt0, vt0))
    a("v_and_b32 v%d, 31, v%d" % (vt1, vL))
    a("v_lshl_add_u32 v%d, v%d, 4, v%d" % (vt0, vt1, vt0))
    a("v_add_u32 v%d, s%d, v%d" % (vQG, sT1, vt0))
    a("s_lshl_b32 s%d, s%d, 3" % (sRP, sKVH))
    a("s_add_u32 s%d, s%d, s%d" % (sRP, sRP, sMM))
    a("s_mul_i32 s%d, s%d, %d" % (sT0, sRP, 32 * 1152))
    a("s_lshl_b32 s%d, s%d, 8" % (sT1, sW))
    a("s_add_u32 s%d, s%d, s%d" % (sT0, sT0, sT1))
    a("s_cmp_ge_u32 s%d, 5" % sW)
    a("s_cselect_b32 s%d, 0x%x, s%d" % (sT0, OOB, sT0))
    a("v_mul_u32_u24 v%d, 1152, v%d" % (vt0, vg))
    a("v_lshl_add_u32 v%d, v%d, 4, v%d" % (vt0, vn, vt0))
    a("v_add_u32 v%d, s%d, v%d" % (vWOoff, sT0, vt0))
    a("s_cmp_eq_u32 s%d, 4" % sW)
    a("s_cselect_b32 s%d, 8, 16" % sT1)
    a("v_cmp_gt_u32 vcc, s%d, v%d" % (sT1, vn))
    a("v_mov_b32 v%d, 0x%x" % (vt1, OOB))
    a("v_cndmask_b32 v%d, v%d, v%d, vcc" % (vWOoff, vt1, vWOoff))
    a("s_lshl_b32 s%d, s%d, 10" % (sT1, sW))
    a("v_add_u32 v%d, s%d, v%d" % (vA1, sT1, vLA))
    a("s_waitcnt lgkmcnt(0)")
    a("s_add_u32 s%d, s%d, 1" % (sTAG, sEP))
    a("s_and_b32 s%d, s%d, 0xfff" % (sTAG, sTAG))
    a("v_mov_b32 v%d, s%d" % (vTAG, sTAG))

    def build_oh(dst, src, u):
        for r in range(4):
            a("v_mov_b32_dpp v%d, v%d %s row_mask:0xf bank_mask:0x%x" % (dst + r, src, ror(r, u), 1 << r))
    vm.wait("x1")
    a("v_lshlrev_b32 v%d, v%d, v%d" % (vX0, vE16, vX0))
    a("v_lshlrev_b32 v%d, v%d, v%d" % (vX1, vE16, vX1))
    for i in range(5):
        oh = vOH[i & 1]
        build_oh(oh, vX0 if i < 4 else vX1, i & 3)
        vm.wait("wq%d" % i)
        if i == 0: stamp("wq0")
        issue_next()
        a("v_mfma_f32_16x16x32_bf16 %s, %s, %s, %s" % (vr(vACC), vr(vVR + 4 * i), vr(oh), "0" if i == 0 else vr(vACC)))
    stamp("wq4")
    a("ds_write_b128 v%d, %s offset:%d" % (vA1, vr(vACC), L_RED1))
    a("s_waitcnt lgkmcnt(0)")
    a("s_barrier")
    a("s_cmp_lg_u32 s%d, 6" % sW)
    a("s_cbranch_scc1 L_noqred")
    for w in range(8):
        a("ds_read_b128 %s, v%d offset:%d" % (vr(vR + 4 * w), vLA, L_RED1 + 1024 * w))
    a("s_waitcnt lgkmcnt(0)")
    def tree_add(bases, n):
        cur = list(bases)
        while len(cur) > 1:
            nxt = []
            for k in range(0, len(cur) - 1, 2):
                for j in range(0, n, 2):
                    a("v_pk_add_f32 %s, %s, %s" % (vr(cur[k] + j, 2), vr(cur[k] + j, 2), vr(cur[k + 1] + j, 2)))
                nxt.append(cur[k])
            if len(cur) & 1: nxt.append(cur[-1])
            cur = nxt
    tree_add([vR + 4 * w for w in range(8)], 4)
    for r in range(4):
        a("v_and_or_b32 v%d, v%d, s%d, v%d" % (vR + r, vR + r, sMASK, vTAG))
    a.label("L_noqred")
    vm.issue("qpub", "buffer_store_dwordx4 %s, v%d, %s, 0 offen %s" % (vr(vR), vQP, srd(sWS), cflags))
    stamp("qpub")

    for i in range(16):
        vm.wait("K%d" % i)
        issue_next()
        if i == GK:
            for qq in range(4):
                vm.issue("qg%d" % qq, "buffer_load_dwordx4 %s, v%d, %s, 0 offen offset:%d %s" % (vr(vG + 4 * qq), vQG, srd(sWS), 1024 * qq, cflags))
    stamp("K15")
    for _ in range(XB): issue_next()
    a("s_cmp_lg_u32 s%d, 7" % sW)
    a("s_cbranch_scc1 L_noqg")
    a("s_mov_b32 s%d, %d" % (sCNT, limit))
    assert all(vm.done("qg%d" % q) for q in range(4)), "gather must be older than K15"
    a.label("L_qchk")
    for k in range(16): a("v_xor_b32 v%d, v%d, v%d" % (vG + k, vTAG, vG + k))
    a("v_or3_b32 v%d, v%d, v%d, v%d" % (vT, vG, vG + 1, vG + 2))
    for k in range(3, 15, 2): a("v_or3_b32 v%d, v%d, v%d, v%d" % (vT, vT, vG + k, vG + k + 1))
    a("v_or_b32 v%d, v%d, v%d" % (vT, vT, vG + 15))
    a("v_and_b32 v%d, 0xfff, v%d" % (vT, vT))
    a("v_cmp_ne_u32 vcc, 0, v%d" % vT)
    a("s_cbranch_vccz L_qok")
    a("s_sub_u32 s%d, s%d, 1" % (sCNT, sCNT))
    a("s_cbranch_scc1 L_qok")
    for qq in range(4):
        a("buffer_load_dwordx4 %s, v%d, %s, 0 offen offset:%d %s" % (vr(vG + 4 * qq), vQG, srd(sWS), 1024 * qq, cflags))
    a("s_waitcnt vmcnt(0)")
    a("s_branch L_qchk")
    a.label("L_qok")
    tree_add([vG + 4 * q for q in range(4)], 4)
    a("v_lshrrev_b32 v%d, 5, v%d" % (vT, vL))
    a("v_lshlrev_b32 v%d, 8, v%d" % (vT, vT))
    a("v_bfe_u32 v%d, v%d, 3, 2" % (vT + 1, vL))
    a("v_lshl_add_u32 v%d, v%d, 6, v%d" % (vT, vT + 1, vT))
    a("v_and_b32 v%d, 7, v%d" % (vT + 1, vL))
    a("v_lshl_add_u32 v%d, v%d, 1, v%d" % (vT, vT + 1, vT))
    a("v_cvt_pk_bf16_f32 v%d, v%d, v%d" % (vT + 2, vG, vG + 1))
    a("v_cvt_pk_bf16_f32 v%d, v%d, v%d" % (vT + 3, vG + 2, vG + 3))
    a("ds_write_b16 v%d, v%d offset:%d" % (vT, vT + 2, L_QB))
    a("ds_write_b16_d16_hi v%d, v%d offset:%d" % (vT, vT + 2, L_QB + 16))
    a("ds_write_b16 v%d, v%d offset:%d" % (vT, vT + 3, L_QB + 32))
    a("ds_write_b16_d16_hi v%d, v%d offset:%d" % (vT, vT + 3, L_QB + 48))
    a("s_waitcnt lgkmcnt(0)")
    a.label("L_noqg")
    a("v_bfe_u32 v%d, v%d, 1, 1" % (vT, vL))
    a("v_lshlrev_b32 v%d, 8, v%d" % (vT, vT))
    a("v_lshrrev_b32 v%d, 2, v%d" % (vT + 1, vL))
    a("v_lshl_add_u32 v%d, v%d, 4, v%d" % (vT, vT + 1, vT))
    a("s_barrier")
    stamp("qready")
    a("ds_read_b128 %s, v%d offset:%d" % (vr(vQB), vT, L_QB))
    a("v_bfe_u32 v%d, v%d, 1, 1" % (vA2, vL))
    a("v_lshlrev_b32 v%d, 5, v%d" % (vA2, vA2))
    a("s_lshl_b32 s%d, s%d, 2" % (sT0, sW))
    a("v_add_u32 v%d, s%d, v%d" % (vA3, sT0, vA2))
    a("s_waitcnt lgkmcnt(0)")

    def qk_mfma(t):
        for u in range(4):
            k = vKR + 4 * (4 * t + u)
            a("v_mfma_f32_16x16x32_bf16 %s, %s, %s, 0" % (vr(k), vr(k), vr(vQB)))
    def qk_dpp(t):
        for r in range(4):
            for u in range(4):
                k = vKR + 4 * (4 * t + u) + r
                if r == 0:
                    a("v_mov_b32_dpp v%d, v%d %s row_mask:0xf bank_mask:0x%x" % (vS + t, k, ror(u, r), 1 << u))
                else:
                    a("v_add_f32_dpp v%d, v%d, v%d %s row_mask:0xf bank_mask:0x%x" % (vS + t, k, vS + t, ror(u, r), 1 << u))
    qk_mfma(0); qk_mfma(1); qk_dpp(0); qk_mfma(2); qk_dpp(1); qk_mfma(3); qk_dpp(2); qk_dpp(3)
    def rowreduce(op, v, tmp):
        a("v_mov_b32 v%d, v%d" % (tmp, v))
        a("v_permlane16_swap_b32 v%d, v%d" % (v, tmp))
        a("%s v%d, v%d, v%d" % (op, v, v, tmp))
        a("v_mov_b32 v%d, v%d" % (tmp, v))
        a("v_permlane32_swap_b32 v%d, v%d" % (v, tmp))
        a("%s v%d, v%d, v%d" % (op, v, v, tmp))
    def bankreduce(op, v):
        a("%s_dpp v%d, v%d, v%d row_ror:4 row_mask:0xf bank_mask:0xf" % (op, v, v, v))
        a("%s_dpp v%d, v%d, v%d row_ror:8 row_mask:0xf bank_mask:0xf" % (op, v, v, v))
    a("v_max3_f32 v%d, v%d, v%d, v%d" % (vT, vS, vS + 1, vS + 2))
    a("v_max_f32 v%d, v%d, v%d" % (vT, vT, vS + 3))
    bankreduce("v_max_f32", vT)
    rowreduce("v_max_f32", vT, vT + 1)
    a("ds_write_b32 v%d, v%d offset:%d" % (vA3, vT, L_MX))
    a("s_waitcnt lgkmcnt(0)")
    a("s_barrier")
    a("ds_read_b128 %s, v%d offset:%d" % (vr(vT), vA2, L_MX))
    a("ds_read_b128 %s, v%d offset:%d" % (vr(vT + 4), vA2, L_MX + 16))
    a("s_waitcnt lgkmcnt(0)")
    def max8(dst, b):
        a("v_max3_f32 v%d, v%d, v%d, v%d" % (b, b, b + 1, b + 2))
        a("v_max3_f32 v%d, v%d, v%d, v%d" % (b + 3, b + 3, b + 4, b + 5))
        a("v_max3_f32 v%d, v%d, v%d, v%d" % (b, b, b + 6, b + 7))
        a("v_max_f32 v%d, v%d, v%d" % (dst, b, b + 3))
        a("v_mul_f32 v%d, s%d, v%d" % (dst, sC, dst))
        a("v_and_b32 v%d, s%d, v%d" % (dst, sMASK, dst))
    max8(vM, vT)
    for t in range(4): a("v_fma_f32 v%d, v%d, s%d, -v%d" % (vS + t, vS + t, sC, vM))
    for t in range(4): a("v_exp_f32 v%d, v%d" % (vS + t, vS + t))
    a("v_add_f32 v%d, v%d, v%d" % (vT, vS, vS + 1))
    a("v_add_f32 v%d, v%d, v%d" % (vT + 1, vS + 2, vS + 3))
    a("v_add_f32 v%d, v%d, v%d" % (vT, vT, vT + 1))
    for t in range(4):
        a("v_cvt_pk_bf16_f32 v%d, v%d, v%d" % (vS + t, vS + t, vS + t))
    for t in range(4):
        a("v_and_b32 v%d, v%d, v%d" % (vS + t, vEM, vS + t))
    bankreduce("v_add_f32", vT)
    rowreduce("v_add_f32", vT, vT + 1)
    a("ds_write_b32 v%d, v%d offset:%d" % (vA3, vT, L_LS))
    a("s_waitcnt lgkmcnt(0)")
    a("s_barrier")
    stamp("soft")
    a("s_cmp_lt_u32 s%d, 6" % sW)
    a("s_cbranch_scc1 L_nopubprep")
    a("s_sub_u32 s%d, s%d, 6" % (sT0, sW))
    a("s_lshl_b32 s%d, s%d, 5" % (sT1, sT0))
    a("v_mov_b32 v%d, s%d" % (vT + 8, sT1))
    a("ds_read_b128 %s, v%d offset:%d" % (vr(vT), vT + 8, L_MX))
    a("ds_read_b128 %s, v%d offset:%d" % (vr(vT + 4), vT + 8, L_MX + 16))
    a("ds_read_b128 %s, v%d offset:%d" % (vr(vT + 12), vT + 8, L_LS))
    a("ds_read_b128 %s, v%d offset:%d" % (vr(vT + 16), vT + 8, L_LS + 16))
    a("s_waitcnt lgkmcnt(0)")
    max8(vPM, vT)
    a("v_pk_add_f32 %s, %s, %s" % (vr(vT + 12, 2), vr(vT + 12, 2), vr(vT + 14, 2)))
    a("v_pk_add_f32 %s, %s, %s" % (vr(vT + 16, 2), vr(vT + 16, 2), vr(vT + 18, 2)))
    a("v_pk_add_f32 %s, %s, %s" % (vr(vT + 12, 2), vr(vT + 12, 2), vr(vT + 16, 2)))
    a("v_add_f32 v%d, v%d, v%d" % (vPL, vT + 12, vT + 13))
    a("v_or_b32 v%d, v%d, v%d" % (vPM, vTAG, vPM))
    a("v_and_or_b32 v%d, v%d, s%d, v%d" % (vPL, vPL, sMASK, vTAG))
    a("v_lshrrev_b32 v%d, 4, v%d" % (vT, vL))
    a("v_lshlrev_b32 v%d, 4, v%d" % (vT, vT))
    a("v_and_b32 v%d, 1, v%d" % (vT + 1, vL))
    a("v_lshl_add_u32 v%d, v%d, 3, v%d" % (vT, vT + 1, vT))
    a("v_bfe_u32 v%d, v%d, 3, 1" % (vT + 1, vL))
    a("v_lshl_add_u32 v%d, v%d, 2, v%d" % (vT, vT + 1, vT))
    a("v_bfe_u32 v%d, v%d, 2, 1" % (vT + 1, vL))
    a("v_add_u32 v%d, v%d, v%d" % (vT, vT, vT + 1))
    a("s_lshl_b32 s%d, s%d, 1" % (sT1, sT0))
    a("v_add_u32 v%d, s%d, v%d" % (vT, sT1, vT))
    a("v_lshlrev_b32 v%d, 4, v%d" % (vT, vT))
    a("v_bfe_u32 v%d, v%d, 1, 1" % (vT + 1, vL))
    a("v_lshl_add_u32 v%d, v%d, 3, v%d" % (vA2, vT + 1, vT))
    a("s_lshl_b32 s%d, s%d, 14" % (sT1, sG))
    a("s_lshl_b32 s%d, s%d, 11" % (sT2, sMM))
    a("s_add_u32 s%d, s%d, s%d" % (sT1, sT1, sT2))
    a("s_lshl_b32 s%d, s%d, 10" % (sT2, sT0))
    a("s_add_u32 s%d, s%d, s%d" % (sT1, sT1, sT2))
    a("s_add_u32 s%d, s%d, 0x%x" % (sT1, sT1, WS_A))
    a("v_add_u32 v%d, s%d, v%d" % (vA3, sT1, vLA))
    a.label("L_nopubprep")
    a("s_cmp_lg_u32 s%d, 5" % sW)
    a("s_cbranch_scc1 L_nogprep")
    a("s_lshl_b32 s%d, s%d, 14" % (sT1, sG))
    a("s_lshl_b32 s%d, s%d, 8" % (sT2, sMM))
    a("s_add_u32 s%d, s%d, s%d" % (sT1, sT1, sT2))
    a("s_add_u32 s%d, s%d, 0x%x" % (sT1, sT1, WS_A))
    a("v_bfe_u32 v%d, v%d, 1, 1" % (vT, vL))
    a("v_lshlrev_b32 v%d, 2, v%d" % (vT, vT))
    a("v_and_b32 v%d, 1, v%d" % (vT + 1, vL))
    a("v_add_u32 v%d, v%d, v%d" % (vT, vT, vT + 1))
    a("v_lshlrev_b32 v%d, 11, v%d" % (vT, vT))
    a("v_lshrrev_b32 v%d, 2, v%d" % (vT + 1, vL))
    a("v_lshl_add_u32 v%d, v%d, 4, v%d" % (vT, vT + 1, vT))
    a("v_add_u32 v%d, s%d, v%d" % (vA3, sT1, vT))
    a.label("L_nogprep")

    remaining = len(seq) - pos[0]
    per_step = [0] * 16
    nV_left = sum(1 for k, _ in seq[pos[0]:] if k == "V")
    step = 0
    for _ in range(nV_left):
        per_step[step] += 1; step += 1
    wo_steps = 16 - step
    left = 8
    for s_ in range(step, 16):
        c = -(-left // (16 - s_))
        per_step[s_] += c; left -= c
    assert left == 0 and wo_steps > 0
    build_oh(vOH[0], vS, 0)
    for i in range(16):
        oh = vOH[i & 1]
        vm.wait("V%d" % i)
        if i == 15: stamp("V15")
        a("v_mfma_f32_16x16x32_bf16 %s, %s, %s, %s" % (vr(vACC), vr(vVR + 4 * i), vr(oh), "0" if i == 0 else vr(vACC)))
        for _ in range(per_step[i]): issue_next()
        if i < 15: build_oh(vOH[(i + 1) & 1], vS + ((i + 1) >> 2), (i + 1) & 3)
    assert pos[0] == len(seq)
    a("ds_write_b128 v%d, %s offset:%d" % (vA1, vr(vACC), L_RED2))
    a("s_waitcnt lgkmcnt(0)")
    a("s_barrier")
    stamp("barA")
    a("s_cmp_lt_u32 s%d, 5" % sW)
    a("s_cbranch_scc1 L_barB")
    a("s_cmp_eq_u32 s%d, 5" % sW)
    a("s_cbranch_scc1 L_gatherA")
    for w in range(8):
        a("ds_read_b64 %s, v%d offset:%d" % (vr(vR + 2 * w, 2), vA2, L_RED2 + 1024 * w))
    a("s_waitcnt lgkmcnt(0)")
    tree_add([vR + 2 * w for w in range(8)], 2)
    a("v_and_or_b32 v%d, v%d, s%d, v%d" % (vT, vR, sMASK, vTAG))
    a("v_and_or_b32 v%d, v%d, s%d, v%d" % (vT + 1, vR + 1, sMASK, vTAG))
    a("v_mov_b32 v%d, v%d" % (vT + 2, vPM))
    a("v_mov_b32 v%d, v%d" % (vT + 3, vPL))
    a("buffer_store_dwordx4 %s, v%d, %s, 0 offen %s" % (vr(vT), vA3, srd(sWS), cflags))
    stamp("apub")
    a("s_branch L_barB")
    a.label("L_gatherA")
    a("s_mov_b32 s%d, %d" % (sCNT, limit))
    a("s_movk_i32 s%d, 0x1000" % sOFF)
    a.label("L_pollA")
    a("buffer_load_dwordx4 %s, v%d, %s, 0 offen %s" % (vr(vG), vA3, srd(sWS), cflags))
    a("buffer_load_dwordx4 %s, v%d, %s, s%d offen %s" % (vr(vG + 4), vA3, srd(sWS), sOFF, cflags))
    a("s_waitcnt vmcnt(0)")
    for k in range(8): a("v_xor_b32 v%d, v%d, v%d" % (vG + k, vTAG, vG + k))
    a("v_or3_b32 v%d, v%d, v%d, v%d" % (vT, vG, vG + 1, vG + 2))
    a("v_or3_b32 v%d, v%d, v%d, v%d" % (vT + 1, vG + 3, vG + 4, vG + 5))
    a("v_or3_b32 v%d, v%d, v%d, v%d" % (vT, vT, vG + 6, vG + 7))
    a("v_or_b32 v%d, v%d, v%d" % (vT, vT, vT + 1))
    a("v_and_b32 v%d, 0xfff, v%d" % (vT, vT))
    a("v_cmp_ne_u32 vcc, 0, v%d" % vT)
    a("s_cbranch_vccz L_okA")
    a("s_sub_u32 s%d, s%d, 1" % (sCNT, sCNT))
    a("s_cbranch_scc0 L_pollA")
    a.label("L_okA")
    stamp("agot")
    o00, o01, m0, l0, o10, o11, m1, l1 = [vG + k for k in range(8)]
    X1 = "quad_perm:[1,0,3,2] row_mask:0xf bank_mask:0xf"
    a("v_max_f32 v%d, v%d, v%d" % (vT, m0, m1))
    a("v_max_f32_dpp v%d, v%d, v%d %s" % (vT, vT, vT, X1))
    a("v_sub_f32 v%d, v%d, v%d" % (m0, m0, vT))
    a("v_sub_f32 v%d, v%d, v%d" % (m1, m1, vT))
    a("v_exp_f32 v%d, v%d" % (m0, m0))
    a("v_exp_f32 v%d, v%d" % (m1, m1))
    a("v_mul_f32 v%d, v%d, v%d" % (l0, m0, l0))
    a("v_mul_f32 v%d, v%d, v%d" % (o00, m0, o00))
    a("v_mul_f32 v%d, v%d, v%d" % (o01, m0, o01))
    a("v_fmac_f32 v%d, v%d, v%d" % (l0, m1, l1))
    a("v_fmac_f32 v%d, v%d, v%d" % (o00, m1, o10))
    a("v_fmac_f32 v%d, v%d, v%d" % (o01, m1, o11))
    a("v_add_f32_dpp v%d, v%d, v%d %s" % (l0, l0, l0, X1))
    a("v_add_f32_dpp v%d, v%d, v%d %s" % (o00, o00, o00, X1))
    a("v_add_f32_dpp v%d, v%d, v%d %s" % (o01, o01, o01, X1))
    a("v_rcp_f32 v%d, v%d" % (l0, l0))
    a("v_mul_f32 v%d, v%d, v%d" % (o00, l0, o00))
    a("v_mul_f32 v%d, v%d, v%d" % (o01, l0, o01))
    a("v_cvt_pk_bf16_f32 v%d, v%d, v%d" % (vT, o00, o00))
    a("v_cvt_pk_bf16_f32 v%d, v%d, v%d" % (vT + 1, o01, o01))
    a("v_and_b32 v%d, v%d, v%d" % (vT, vEM, vT))
    a("v_and_b32 v%d, v%d, v%d" % (vT + 1, vEM, vT + 1))
    a("v_lshlrev_b32 v%d, 3, v%d" % (vT + 2, vL))
    a("ds_write_b64 v%d, %s offset:%d" % (vT + 2, vr(vT, 2), L_PB))
    a("s_waitcnt lgkmcnt(0)")
    a.label("L_barB")
    a("v_lshlrev_b32 v%d, 3, v%d" % (vT + 2, vL))
    a("s_barrier")
    stamp("barB")
    a("s_cmp_ge_u32 s%d, 5" % sW)
    a("s_cbranch_scc1 L_phase4")
    a("ds_read_b64 %s, v%d offset:%d" % (vr(vS, 2), vT + 2, L_PB))
    a("s_lshl_b32 s%d, s%d, 7" % (sT0, sBETA))
    a("s_add_u32 s%d, s%d, s%d" % (sT0, sT0, sRP))
    a("s_mul_i32 s%d, s%d, %d" % (sT0, sT0, BSTRIDE))
    a("s_add_u32 s%d, s%d, 0x%x" % (sT0, sT0, WS_B))
    a("v_add_u32 v%d, s%d, v%d" % (vA3, sT0, vA1))
    a("s_waitcnt vmcnt(0) lgkmcnt(0)")
    stamp("wo")
    build_oh(vOH[0], vS, 0)
    for i in range(8):
        oh = vOH[i & 1]
        if i < 7: build_oh(vOH[(i + 1) & 1], vS + ((i + 1) >> 2), (i + 1) & 3)
        a("v_mfma_f32_16x16x32_bf16 %s, %s, %s, %s" % (vr(vACC), vr(vKR + 4 * i), vr(oh), "0" if i == 0 else vr(vACC)))
    for r in range(4):
        a("v_and_or_b32 v%d, v%d, s%d, v%d" % (vT + r, vACC + r, sMASK, vTAG))
    a("buffer_store_dwordx4 %s, v%d, %s, 0 offen %s" % (vr(vT), vA3, srd(sWS), cflags))
    stamp("bpub")
    a.label("L_phase4")
    a("s_lshl_b32 s%d, s%d, 4" % (sRHO, sMM))
    a("s_add_u32 s%d, s%d, s%d" % (sRHO, sRHO, sKVH))
    a("s_cmp_ge_u32 s%d, 72" % sRHO)
    a("s_cbranch_scc1 L_exit")
    a("s_lshl_b32 s%d, s%d, 7" % (sT0, sBETA))
    a("s_lshl_b32 s%d, s%d, 4" % (sT1, sW))
    a("s_add_u32 s%d, s%d, s%d" % (sT0, sT0, sT1))
    a("s_mul_i32 s%d, s%d, %d" % (sT0, sT0, BSTRIDE))
    a("s_lshl_b32 s%d, s%d, 6" % (sT1, sRHO))
    a("s_add_u32 s%d, s%d, s%d" % (sT0, sT0, sT1))
    a("s_add_u32 s%d, s%d, 0x%x" % (sT0, sT0, WS_B))
    a("v_lshrrev_b32 v%d, 2, v%d" % (vT + 4, vL))
    a("v_mul_u32_u24 v%d, %d, v%d" % (vT + 4, BSTRIDE, vT + 4))
    a("v_and_b32 v%d, 3, v%d" % (vT + 5, vL))
    a("v_lshl_add_u32 v%d, v%d, 4, v%d" % (vT + 4, vT + 5, vT + 4))
    a("v_add_u32 v%d, s%d, v%d" % (vA2, sT0, vT + 4))
    a("v_lshrrev_b32 v%d, 4, v%d" % (vT + 4, vL))
    a("v_lshl_add_u32 v%d, v%d, 2, v%d" % (vT + 5, vT + 4, vT + 5))
    a("v_lshlrev_b32 v%d, 2, v%d" % (vT + 5, vT + 5))
    a("s_lshl_b32 s%d, s%d, 6" % (sT1, sW))
    a("v_add_u32 v%d, s%d, v%d" % (vT + 6, sT1, vT + 5))
    a("v_bfe_u32 v%d, v%d, 2, 2" % (vT + 7, vL))
    a("v_lshl_add_u32 v%d, v%d, 6, v%d" % (vT + 7, vT + 7, vT + 5))
    a("s_mov_b32 s%d, %d" % (sCNT, limit))
    a.label("L_pollB")
    a("buffer_load_dwordx4 %s, v%d, %s, 0 offen %s" % (vr(vG), vA2, srd(sWS), cflags))
    a("s_waitcnt vmcnt(0)")
    for k in range(4): a("v_xor_b32 v%d, v%d, v%d" % (vG + k, vTAG, vG + k))
    a("v_or3_b32 v%d, v%d, v%d, v%d" % (vT, vG, vG + 1, vG + 2))
    a("v_or_b32 v%d, v%d, v%d" % (vT, vT, vG + 3))
    a("v_and_b32 v%d, 0xfff, v%d" % (vT, vT))
    a("v_cmp_ne_u32 vcc, 0, v%d" % vT)
    a("s_cbranch_vccz L_okB")
    a("s_sub_u32 s%d, s%d, 1" % (sCNT, sCNT))
    a("s_cbranch_scc0 L_pollB")
    a.label("L_okB")
    stamp("bgot")
    a("v_permlane32_swap_b32 v%d, v%d" % (vG, vG + 1))
    a("v_permlane32_swap_b32 v%d, v%d" % (vG + 2, vG + 3))
    a("v_add_f32 v%d, v%d, v%d" % (vG, vG, vG + 1))
    a("v_add_f32 v%d, v%d, v%d" % (vG + 2, vG + 2, vG + 3))
    a("v_permlane16_swap_b32 v%d, v%d" % (vG, vG + 2))
    a("v_add_f32 v%d, v%d, v%d" % (vG, vG, vG + 2))
    bankreduce("v_add_f32", vG)
    a("ds_write_b32 v%d, v%d offset:%d" % (vT + 6, vG, L_FIN))
    a("s_waitcnt lgkmcnt(0)")
    a("s_barrier")
    a("s_cmp_lg_u32 s%d, 0" % sW)
    a("s_cbranch_scc1 L_exit")
    a("ds_read2_b32 %s, v%d offset0:%d offset1:%d" % (vr(vG, 2), vT + 7, 0, 64) if False else
      "ds_read_b32 v%d, v%d offset:%d" % (vG, vT + 7, L_FIN))
    a("ds_read_b32 v%d, v%d offset:%d" % (vG + 1, vT + 7, L_FIN + 256))
    a("s_lshr_b32 s%d, s%d, 4" % (sT0, sRHO))
    a("s_lshl_b32 s%d, s%d, 7" % (sT0, sT0))
    a("s_bfe_u32 s%d, s%d, 0x20002" % (sT1, sRHO))
    a("s_lshl_b32 s%d, s%d, 5" % (sT1, sT1))
    a("s_add_u32 s%d, s%d, s%d" % (sT0, sT0, sT1))
    a("s_and_b32 s%d, s%d, 3" % (sT1, sRHO))
    a("s_lshl_b32 s%d, s%d, 1" % (sT1, sT1))
    a("s_add_u32 s%d, s%d, s%d" % (sT0, sT0, sT1))
    a("s_mul_i32 s%d, s%d, 576" % (sT1, sBETA))
    a("s_add_u32 s%d, s%d, s%d" % (sT0, sT0, sT1))
    a("v_bfe_u32 v%d, v%d, 4, 1" % (vT, vL))
    a("v_lshlrev_b32 v%d, 4, v%d" % (vT, vT))
    a("v_lshrrev_b32 v%d, 5, v%d" % (vT + 1, vL))
    a("v_lshl_add_u32 v%d, v%d, 3, v%d" % (vT, vT + 1, vT))
    a("v_bfe_u32 v%d, v%d, 1, 1" % (vT + 1, vL))
    a("v_mul_u32_u24 v%d, 1152, v%d" % (vT + 1, vT + 1))
    a("v_and_b32 v%d, 1, v%d" % (vT + 2, vL))
    a("v_add3_u32 v%d, v%d, v%d, v%d" % (vT, vT, vT + 1, vT + 2))
    a("v_add_u32 v%d, s%d, v%d" % (vT, sT0, vT))
    a("v_lshlrev_b32 v%d, 1, v%d" % (vT, vT))
    a("v_bfe_u32 v%d, v%d, 2, 2" % (vT + 1, vL))
    a("v_cmp_eq_u32 vcc, 0, v%d" % (vT + 1))
    a("v_mov_b32 v%d, 0x%x" % (vT + 2, OOB))
    a("v_cndmask_b32 v%d, v%d, v%d, vcc" % (vT, vT + 2, vT))
    a("s_waitcnt lgkmcnt(0)")
    a("v_add_f32 v%d, v%d, v%d" % (vG, vG, vG + 1))
    bankreduce("v_add_f32", vG)
    a("v_cvt_pk_bf16_f32 v%d, v%d, v%d" % (vG, vG, vG))
    a("buffer_store_short v%d, v%d, %s, 0 offen" % (vG, vT, srd(sOUT)))
    a("s_cmp_lg_u32 s%d, 0" % sRHO)
    a("s_cbranch_scc1 L_exit")
    a("s_lshl_b32 s%d, s%d, 8" % (sT0, sBETA))
    a("v_mov_b32 v%d, s%d" % (vT + 3, sT0))
    a("v_cmp_eq_u32 vcc, 0, v%d" % vL)
    a("v_cndmask_b32 v%d, v%d, v%d, vcc" % (vT + 3, vT + 2, vT + 3))
    a("buffer_store_dword v%d, v%d, %s, 0 offen %s" % (vTAG, vT + 3, srd(sWS), cflags))
    a.label("L_exit")
    if stamps:
        stamp("end")
        a("s_cmp_eq_u32 s%d, 0" % sW); a("s_cbranch_scc0 L_st5")
        flush_stamps(0, ["start", "karg", "wq0", "wq4", "qpub", "K15", "qready", "soft", "V15", "barA", "barB", "wo", "bpub", "bgot", "end"])
        a("s_branch L_end")
        a.label("L_st5")
        a("s_cmp_eq_u32 s%d, 5" % sW); a("s_cbranch_scc0 L_st6")
        flush_stamps(16, ["agot", "barB", "bgot", "end"])
        a("s_branch L_end")
        a.label("L_st6")
        a("s_cmp_eq_u32 s%d, 6" % sW); a("s_cbranch_scc0 L_end")
        flush_stamps(24, ["qpub", "K15", "V15", "apub", "bgot", "end"])
    a.label("L_end")
    a("s_endpgm")
    a.raw("L_codeend:")
    a.raw('.section .rodata,"a"')
    a.raw(".p2align 6")
    a.raw(".amdhsa_kernel " + KN)
    a.raw("  .amdhsa_next_free_vgpr 256")
    a.raw("  .amdhsa_next_free_sgpr 102")
    a.raw("  .amdhsa_accum_offset 256")
    a.raw("  .amdhsa_group_segment_fixed_size 0")
    a.raw("  .amdhsa_kernarg_size 104")
    a.raw("  .amdhsa_user_sgpr_count 2")
    a.raw("  .amdhsa_user_sgpr_kernarg_segment_ptr 1")
    a.raw("  .amdhsa_system_sgpr_workgroup_id_x 1")
    a.raw(".end_amdhsa_kernel")
    return a.text(), a.nops

if __name__ == "__main__":
    import build, ast
    out = sys.argv[1]
    kw = {}
    for x in sys.argv[2:]:
        k, v = x.split("=", 1)
        try: kw[k] = ast.literal_eval(v)
        except Exception: kw[k] = v
    t, nops = gen(**kw)
    open(out, "w").write(t)
    print("nops inserted:", nops, "lines:", t.count("\n"))
    build.build(out)
```

```python
import sys
from asmlib import Asm, VM

KN = "concat_heads__sliding_block_cached__sliding_block_cached__decode_kernel"

HEADER = """; Fused decode step for two independent branches (A, B), one launch, 256 workgroups of 8 waves (one per CU).
; Kernarg (ptrs): 0 A_x 8 A_k 16 A_v 24 A_wq 32 A_wo 40 B_x 48 B_k 56 B_v 64 B_wq 72 B_wo 80 out 88 debug 96 ws
"""

WS_BYTES = 287314432
WS_Q = 0x10000
WS_A = 0x50000
WS_B = 0xD0000
BSTRIDE = 5120
STAMP_OFF = 0x10000000
OOB = 0x80000000
L_RED1 = 0
L_RED2 = 8192
L_QB = 16384
L_MX = 16896
L_LS = 16960
L_PB = 17024
L_FIN = 17536
LDS_BYTES = 18432

sW = 3
sBETA = 4; sKO = 5; sMM = 6; sKVH = 7
sG = 8
sT0 = 9; sT1 = 10; sT2 = 11; sT3 = 12
sEP = 13; sTAG = 14; sCNT = 15
sMASK = 16
sC = 17
sRHO = 18; sRP = 19
sOFF = 20; sOFF2 = 21
sX = 24; sK = 28; sV = 32; sWQ = 36; sWO = 40; sWS = 44; sOUT = 48; sCODE = 52
sSTAMP = 60
def srd(b): return "s[%d:%d]" % (b, b + 3)
def sp(b): return "s[%d:%d]" % (b, b + 1)

vL = 0
vKoff = 1; vVoff = 2; vWQoff = 3; vWQ5 = 4; vWOoff = 5; vXoff = 6
vE16 = 7; vEM = 8; vQG = 9; vQP = 10; vCD = 11
vX0 = 12; vX1 = 13; vTAG = 14; vLA = 15
vOH = [16, 20]
vACC = 24
vQB = 28
vS = 32
vT = 36
vKR = 64
vVR = 128
vG = 192
vR = 208
vDUM = 240
vM = 244; vLS = 245; vA1 = 246; vA2 = 247; vA3 = 248; vPM = 249; vPL = 250

def vr(b, n=4): return "v[%d:%d]" % (b, b + n - 1)

def ror(dst_bank, src_bank):
    n = (4 * (dst_bank - src_bank)) % 16
    return "quad_perm:[0,1,2,3]" if n == 0 else "row_ror:%d" % n

def gen(W=4, XB=2, GK=8, ldflags="nt", stamps=False, limit=200000, codepf=True, cflags="sc1", prio=False, dbgst=False, dbgwg=0, spin=0):
    a = Asm(); vm = VM(a)
    nst = [0]
    stamp_regs = []
    def stamp(name):
        if not stamps: return
        r = sSTAMP + 2 * nst[0]; nst[0] += 1
        assert r + 1 <= 99
        stamp_regs.append((name, r))
        a("s_memrealtime %s" % sp(r))
    def flush_dbg(first_idx, names):
        a("s_cmp_lg_u32 s2, %d" % dbgwg); a("s_cbranch_scc1 L_end")
        a("s_load_dwordx2 %s, s[0:1], 88" % sp(sCODE))
        a("s_waitcnt lgkmcnt(0)")
        a("s_mov_b32 s%d, 256" % (sCODE + 2)); a("s_mov_b32 s%d, 0x20000" % (sCODE + 3))
        a("v_cmp_ne_u32 vcc, 0, v%d" % vL)
        a("v_mov_b32 v%d, 0" % vT)
        a("v_mov_b32 v%d, 0x%x" % (vT + 1, OOB))
        a("v_cndmask_b32 v%d, v%d, v%d, vcc" % (vT, vT, vT + 1))
        idx = first_idx
        for nm in names:
            r = dict(stamp_regs)[nm]
            a("s_sub_u32 s%d, s%d, s%d" % (sT0, r, dict(stamp_regs)["start"]))
            a("v_mov_b32 v%d, s%d" % (vT + 2, sT0))
            a("buffer_store_dword v%d, v%d, %s, 0 offen offset:%d" % (vT + 2, vT, srd(sCODE), 4 * idx))
            a("s_nop 1")
            idx += 1
    def flush_stamps(first_idx, names=None):
        if not stamps: return
        if dbgst:
            if first_idx == 0: flush_dbg(0, ["start", "karg", "wq0", "wq4", "K15", "qready", "soft", "V15", "barA", "barB", "bpub", "bgot", "end"])
            return
        a("s_waitcnt lgkmcnt(0)")
        a("s_lshl_b32 s%d, s2, 8" % sT0)
        a("s_add_u32 s%d, s%d, 0x%x" % (sT0, sT0, STAMP_OFF))
        a("v_mov_b32 v%d, s%d" % (vT, sT0))
        a("v_cmp_ne_u32 vcc, 0, v%d" % vL)
        a("v_mov_b32 v%d, 0x%x" % (vT + 1, OOB))
        a("v_cndmask_b32 v%d, v%d, v%d, vcc" % (vT, vT, vT + 1))
        idx = first_idx
        for (nm, r) in stamp_regs:
            if names is not None and nm not in names: continue
            a("v_mov_b32 v%d, s%d" % (vT + 2, r)); a("v_mov_b32 v%d, s%d" % (vT + 3, r + 1))
            a("buffer_store_dwordx2 %s, v%d, %s, 0 offen offset:%d" % (vr(vT + 2, 2), vT, srd(sWS), 8 * idx))
            a("s_nop 1")
            idx += 1
        assert idx <= 32

    a.raw(HEADER.rstrip())
    a.raw("; @launch grid=(256,1,1) block=(512,1,1) lds=%d" % LDS_BYTES)
    a.raw('.amdgcn_target "amdgcn-amd-amdhsa--gfx950"')
    a.raw(".text"); a.raw(".globl " + KN); a.raw(".p2align 8"); a.raw(".type %s,@function" % KN)
    a.raw(KN + ":")
    a.label("L_begin")
    a("s_cmp_ge_u32 s2, 256")
    a("s_cbranch_scc1 L_end")
    if spin:
        a("s_memrealtime s[56:57]")
    if stamps:
        for r_ in range(sSTAMP + 2, 100, 2): a("s_mov_b64 %s, 0" % sp(r_))
        a("s_memrealtime %s" % sp(sSTAMP)); stamp_regs.append(("start", sSTAMP)); nst[0] = 1
    a("s_bfe_u32 s%d, s2, 0x10004" % sBETA)
    a("s_mul_i32 s%d, s%d, 40" % (sKO, sBETA))
    a("s_load_dwordx2 %s, s[0:1], s%d" % (sp(sX), sKO))
    a("s_load_dwordx2 %s, s[0:1], s%d offset:24" % (sp(sWQ), sKO))
    a("s_load_dwordx2 %s, s[0:1], s%d offset:8" % (sp(sK), sKO))
    a("s_load_dwordx2 %s, s[0:1], s%d offset:16" % (sp(sV), sKO))
    a("s_load_dwordx2 %s, s[0:1], s%d offset:32" % (sp(sWO), sKO))
    a("s_load_dwordx2 %s, s[0:1], 96" % sp(sWS))
    a("s_load_dwordx2 %s, s[0:1], 80" % sp(sOUT))
    a("v_lshrrev_b32 v%d, 6, v0" % vT)
    a("v_and_b32 v%d, 63, v0" % vL)
    a("v_readfirstlane_b32 s%d, v%d" % (sW, vT))
    a("s_lshr_b32 s%d, s2, 5" % sMM)
    a("s_and_b32 s%d, s2, 15" % sKVH)
    a("s_and_b32 s%d, s2, 31" % sG)
    for (b, n) in ((sX, 2304), (sWQ, 0x480000), (sK, 0x4000000), (sV, 0x4000000), (sWO, 0x480000), (sWS, WS_BYTES), (sOUT, 4608)):
        a("s_mov_b32 s%d, 0x%x" % (b + 2, n)); a("s_mov_b32 s%d, 0x20000" % (b + 3))
    vg = vT; vn = vT + 1; vbank = vT + 2; vhb = vT + 3; ve = vT + 4; vt0 = vT + 5; vt1 = vT + 6
    a("v_lshrrev_b32 v%d, 4, v%d" % (vg, vL))
    a("v_and_b32 v%d, 15, v%d" % (vn, vL))
    a("v_bfe_u32 v%d, v%d, 2, 2" % (vbank, vL))
    a("v_bfe_u32 v%d, v%d, 1, 1" % (vhb, vL))
    a("v_and_b32 v%d, 1, v%d" % (ve, vL))
    a("s_and_b32 s%d, s%d, 3" % (sT0, sMM))
    a("s_mul_i32 s%d, s%d, 144" % (sT1, sT0))
    a("s_lshl_b32 s%d, s%d, 2" % (sT2, sW))
    a("s_add_u32 s%d, s%d, s%d" % (sT1, sT1, sT2))
    a("v_mul_u32_u24 v%d, 576, v%d" % (vt0, vhb))
    a("v_lshl_add_u32 v%d, v%d, 5, v%d" % (vt0, vbank, vt0))
    a("v_add3_u32 v%d, v%d, v%d, s%d" % (vt0, vt0, vg, sT1))
    a("v_lshlrev_b32 v%d, 1, v%d" % (vXoff, vt0))
    a("s_lshr_b32 s%d, s%d, 2" % (sT2, sMM))
    a("s_lshl_b32 s%d, s%d, 1" % (sT3, sKVH))
    a("s_add_u32 s%d, s%d, s%d" % (sT3, sT3, sT2))
    a("s_lshl_b32 s%d, s%d, 8" % (sT3, sT3))
    a("v_add_u32 v%d, s%d, v%d" % (vt0, sT1, vg))
    a("v_lshlrev_b32 v%d, 13, v%d" % (vt0, vt0))
    a("v_lshl_add_u32 v%d, v%d, 4, v%d" % (vt0, vn, vt0))
    a("v_add_u32 v%d, s%d, v%d" % (vWQoff, sT3, vt0))
    a("s_waitcnt lgkmcnt(0)")
    stamp("karg")
    vm.issue("x0", "buffer_load_ushort v%d, v%d, %s, 0 offen" % (vX0, vXoff, srd(sX)))
    vm.issue("x1", "buffer_load_ushort v%d, v%d, %s, 0 offen offset:256" % (vX1, vXoff, srd(sX)))

    seq = [("wq", i) for i in range(5)] + [("K", i) for i in range(16)] + [("V", i) for i in range(16)] + [("wo", i) for i in range(8)]
    pos = [0]
    WOROW = [0, 4, 16, 20, 8, 12, 24, 28]
    def issue_next():
        if pos[0] >= len(seq): return False
        kind, i = seq[pos[0]]; pos[0] += 1
        nm = "%s%d" % (kind, i)
        if kind == "wq":
            so = "0"
            if i:
                a("s_mov_b32 s%d, 0x%x" % (sOFF, i * 0x40000)); so = "s%d" % sOFF
            vm.issue(nm, "buffer_load_dwordx4 %s, v%d, %s, %s offen %s" % (vr(vVR + 4 * i), vWQ5 if i == 4 else vWQoff, srd(sWQ), so, ldflags))
        elif kind in ("K", "V"):
            so = "0"
            if i >> 2:
                a("s_movk_i32 s%d, 0x%x" % (sOFF, (i >> 2) * 4096)); so = "s%d" % sOFF
            base = vKR if kind == "K" else vVR
            vm.issue(nm, "buffer_load_dwordx4 %s, v%d, %s, %s offen offset:%d %s" % (vr(base + 4 * i), vKoff if kind == "K" else vVoff,
                     srd(sK if kind == "K" else sV), so, (i & 3) * 1024, ldflags))
        else:
            so = "0"
            off = WOROW[i] * 1152
            if off:
                a("s_movk_i32 s%d, 0x%x" % (sOFF, off)); so = "s%d" % sOFF
            vm.issue(nm, "buffer_load_dwordx4 %s, v%d, %s, %s offen %s" % (vr(vKR + 4 * i), vWOoff, srd(sWO), so, ldflags))
        return True
    for _ in range(min(W, 4)): issue_next()
    a("s_lshl_b32 s%d, s%d, 8" % (sT3, sBETA))
    a("s_load_dword s%d, %s, s%d" % (sEP, sp(sWS), sT3))
    a("s_lshl_b32 s%d, s%d, 4" % (sT3, sT2))
    a("s_add_u32 s%d, s%d, s%d" % (sT3, sT3, sKVH))
    a("s_lshl_b32 s%d, s%d, 21" % (sT3, sT3))
    a("s_lshl_b32 s%d, s%d, 17" % (sT0, sT0))
    a("s_add_u32 s%d, s%d, s%d" % (sT3, sT3, sT0))
    a("s_lshl_b32 s%d, s%d, 14" % (sT0, sW))
    a("s_add_u32 s%d, s%d, s%d" % (sT3, sT3, sT0))
    a("s_add_u32 s%d, s%d, 0x180000" % (sT3, sT3))
    a("v_lshlrev_b32 v%d, 4, v%d" % (vLA, vL))
    a("v_add_u32 v%d, s%d, v%d" % (vVoff, sT3, vLA))
    a("v_and_b32 v%d, 3, v%d" % (vt0, vL))
    a("v_lshlrev_b32 v%d, 4, v%d" % (vt0, vt0))
    a("v_lshl_add_u32 v%d, v%d, 6, v%d" % (vt0, vg, vt0))
    a("v_lshl_add_u32 v%d, v%d, 8, v%d" % (vt0, vbank, vt0))
    a("v_add_u32 v%d, s%d, v%d" % (vKoff, sT3, vt0))
    a("s_cmp_lt_u32 s%d, 4" % sW)
    a("s_cselect_b32 s%d, 0, 0x%x" % (sT0, OOB))
    a("v_add_u32 v%d, s%d, v%d" % (vWQ5, sT0, vWQoff))
    while pos[0] < W: issue_next()
    if codepf:
        a("s_getpc_b64 %s" % sp(sCODE))
        a.label("L_pc")
        a("s_sub_u32 s%d, s%d, L_pc-L_begin" % (sCODE, sCODE))
        a("s_subb_u32 s%d, s%d, 0" % (sCODE + 1, sCODE + 1))
        a("s_mov_b32 s%d, L_codeend-L_begin" % (sCODE + 2))
        a("s_mov_b32 s%d, 0x20000" % (sCODE + 3))
        a("s_cmp_eq_u32 s%d, s%d" % (sW, sMM))
        a("s_cselect_b32 s%d, 0, 0x%x" % (sT0, OOB))
        a("s_lshl_b32 s%d, s%d, 10" % (sT1, sMM))
        a("s_add_u32 s%d, s%d, s%d" % (sT0, sT0, sT1))
        a("v_add_u32 v%d, s%d, v%d" % (vCD, sT0, vLA))
        vm.issue("code", "buffer_load_dwordx4 %s, v%d, %s, 0 offen" % (vr(vDUM), vCD, srd(sCODE)))
    a("s_mov_b32 s%d, 0xfffff000" % sMASK)
    a("s_mov_b32 s%d, 0x3e0293ee" % sC)
    a("v_lshlrev_b32 v%d, 4, v%d" % (vE16, ve))
    a("v_mov_b32 v%d, 0xffff" % vEM)
    a("v_lshlrev_b32 v%d, v%d, v%d" % (vEM, vE16, vEM))
    for s_ in vOH:
        for r in range(4): a("v_mov_b32 v%d, 0" % (s_ + r))
    a("s_lshl_b32 s%d, s%d, 13" % (sT0, sG))
    a("s_add_u32 s%d, s%d, 0x%x" % (sT0, sT0, WS_Q))
    a("s_lshl_b32 s%d, s%d, 10" % (sT1, sMM))
    a("s_add_u32 s%d, s%d, s%d" % (sT1, sT1, sT0))
    a("s_cmp_eq_u32 s%d, 6" % sW)
    a("s_cselect_b32 s%d, s%d, 0x%x" % (sT1, sT1, OOB))
    a("v_lshlrev_b32 v%d, 3, v%d" % (vt0, vg))
    a("v_lshl_add_u32 v%d, v%d, 1, v%d" % (vt0, vbank, vt0))
    a("v_add_u32 v%d, v%d, v%d" % (vt0, vt0, ve))
    a("v_lshlrev_b32 v%d, 4, v%d" % (vt0, vt0))
    a("v_lshl_add_u32 v%d, v%d, 9, v%d" % (vt0, vhb, vt0))
    a("v_add_u32 v%d, s%d, v%d" % (vQP, sT1, vt0))
    a("s_lshr_b32 s%d, s%d, 2" % (sT1, sMM))
    a("s_lshl_b32 s%d, s%d, 9" % (sT1, sT1))
    a("s_add_u32 s%d, s%d, s%d" % (sT1, sT1, sT0))
    a("s_cmp_eq_u32 s%d, 7" % sW)
    a("s_cselect_b32 s%d, s%d, 0x%x" % (sT1, sT1, OOB))
    a("v_lshrrev_b32 v%d, 5, v%d" % (vt0, vL))
    a("v_lshlrev_b32 v%d, 12, v%d" % (vt0, vt0))
    a("v_and_b32 v%d, 31, v%d" % (vt1, vL))
    a("v_lshl_add_u32 v%d, v%d, 4, v%d" % (vt0, vt1, vt0))
    a("v_add_u32 v%d, s%d, v%d" % (vQG, sT1, vt0))
    a("s_lshl_b32 s%d, s%d, 3" % (sRP, sKVH))
    a("s_add_u32 s%d, s%d, s%d" % (sRP, sRP, sMM))
    a("s_mul_i32 s%d, s%d, %d" % (sT0, sRP, 32 * 1152))
    a("s_lshl_b32 s%d, s%d, 8" % (sT1, sW))
    a("s_add_u32 s%d, s%d, s%d" % (sT0, sT0, sT1))
    a("s_cmp_ge_u32 s%d, 5" % sW)
    a("s_cselect_b32 s%d, 0x%x, s%d" % (sT0, OOB, sT0))
    a("v_mul_u32_u24 v%d, 1152, v%d" % (vt0, vg))
    a("v_lshl_add_u32 v%d, v%d, 4, v%d" % (vt0, vn, vt0))
    a("v_add_u32 v%d, s%d, v%d" % (vWOoff, sT0, vt0))
    a("s_cmp_eq_u32 s%d, 4" % sW)
    a("s_cselect_b32 s%d, 8, 16" % sT1)
    a("v_cmp_gt_u32 vcc, s%d, v%d" % (sT1, vn))
    a("v_mov_b32 v%d, 0x%x" % (vt1, OOB))
    a("v_cndmask_b32 v%d, v%d, v%d, vcc" % (vWOoff, vt1, vWOoff))
    a("s_lshl_b32 s%d, s%d, 10" % (sT1, sW))
    a("v_add_u32 v%d, s%d, v%d" % (vA1, sT1, vLA))
    a("s_waitcnt lgkmcnt(0)")
    a("s_add_u32 s%d, s%d, 1" % (sTAG, sEP))
    a("s_and_b32 s%d, s%d, 0xfff" % (sTAG, sTAG))
    a("v_mov_b32 v%d, s%d" % (vTAG, sTAG))

    def build_oh(dst, src, u):
        for r in range(4):
            a("v_mov_b32_dpp v%d, v%d %s row_mask:0xf bank_mask:0x%x" % (dst + r, src, ror(r, u), 1 << r))
    vm.wait("x1")
    a("v_lshlrev_b32 v%d, v%d, v%d" % (vX0, vE16, vX0))
    a("v_lshlrev_b32 v%d, v%d, v%d" % (vX1, vE16, vX1))
    for i in range(5):
        oh = vOH[i & 1]
        build_oh(oh, vX0 if i < 4 else vX1, i & 3)
        vm.wait("wq%d" % i)
        if i == 0: stamp("wq0")
        issue_next()
        a("v_mfma_f32_16x16x32_bf16 %s, %s, %s, %s" % (vr(vACC), vr(vVR + 4 * i), vr(oh), "0" if i == 0 else vr(vACC)))
    stamp("wq4")
    a("ds_write_b128 v%d, %s offset:%d" % (vA1, vr(vACC), L_RED1))
    a("s_waitcnt lgkmcnt(0)")
    a("s_barrier")
    a("s_cmp_lg_u32 s%d, 6" % sW)
    a("s_cbranch_scc1 L_noqred")
    for w in range(8):
        a("ds_read_b128 %s, v%d offset:%d" % (vr(vR + 4 * w), vLA, L_RED1 + 1024 * w))
    a("s_waitcnt lgkmcnt(0)")
    def tree_add(bases, n):
        cur = list(bases)
        while len(cur) > 1:
            nxt = []
            for k in range(0, len(cur) - 1, 2):
                for j in range(0, n, 2):
                    a("v_pk_add_f32 %s, %s, %s" % (vr(cur[k] + j, 2), vr(cur[k] + j, 2), vr(cur[k + 1] + j, 2)))
                nxt.append(cur[k])
            if len(cur) & 1: nxt.append(cur[-1])
            cur = nxt
    tree_add([vR + 4 * w for w in range(8)], 4)
    for r in range(4):
        a("v_and_or_b32 v%d, v%d, s%d, v%d" % (vR + r, vR + r, sMASK, vTAG))
    a.label("L_noqred")
    vm.issue("qpub", "buffer_store_dwordx4 %s, v%d, %s, 0 offen %s" % (vr(vR), vQP, srd(sWS), cflags))
    stamp("qpub")

    for i in range(16):
        vm.wait("K%d" % i)
        issue_next()
        if i == GK:
            for qq in range(4):
                vm.issue("qg%d" % qq, "buffer_load_dwordx4 %s, v%d, %s, 0 offen offset:%d %s" % (vr(vG + 4 * qq), vQG, srd(sWS), 1024 * qq, cflags))
    stamp("K15")
    for _ in range(XB): issue_next()
    a("s_cmp_lg_u32 s%d, 7" % sW)
    a("s_cbranch_scc1 L_noqg")
    a("s_mov_b32 s%d, %d" % (sCNT, limit))
    assert all(vm.done("qg%d" % q) for q in range(4)), "gather must be older than K15"
    a.label("L_qchk")
    for k in range(16): a("v_xor_b32 v%d, v%d, v%d" % (vG + k, vTAG, vG + k))
    a("v_or3_b32 v%d, v%d, v%d, v%d" % (vT, vG, vG + 1, vG + 2))
    for k in range(3, 15, 2): a("v_or3_b32 v%d, v%d, v%d, v%d" % (vT, vT, vG + k, vG + k + 1))
    a("v_or_b32 v%d, v%d, v%d" % (vT, vT, vG + 15))
    a("v_and_b32 v%d, 0xfff, v%d" % (vT, vT))
    a("v_cmp_ne_u32 vcc, 0, v%d" % vT)
    a("s_cbranch_vccz L_qok")
    a("s_sub_u32 s%d, s%d, 1" % (sCNT, sCNT))
    a("s_cbranch_scc1 L_qok")
    for qq in range(4):
        a("buffer_load_dwordx4 %s, v%d, %s, 0 offen offset:%d %s" % (vr(vG + 4 * qq), vQG, srd(sWS), 1024 * qq, cflags))
    a("s_waitcnt vmcnt(0)")
    a("s_branch L_qchk")
    a.label("L_qok")
    tree_add([vG + 4 * q for q in range(4)], 4)
    a("v_lshrrev_b32 v%d, 5, v%d" % (vT, vL))
    a("v_lshlrev_b32 v%d, 8, v%d" % (vT, vT))
    a("v_bfe_u32 v%d, v%d, 3, 2" % (vT + 1, vL))
    a("v_lshl_add_u32 v%d, v%d, 6, v%d" % (vT, vT + 1, vT))
    a("v_and_b32 v%d, 7, v%d" % (vT + 1, vL))
    a("v_lshl_add_u32 v%d, v%d, 1, v%d" % (vT, vT + 1, vT))
    a("v_cvt_pk_bf16_f32 v%d, v%d, v%d" % (vT + 2, vG, vG + 1))
    a("v_cvt_pk_bf16_f32 v%d, v%d, v%d" % (vT + 3, vG + 2, vG + 3))
    a("ds_write_b16 v%d, v%d offset:%d" % (vT, vT + 2, L_QB))
    a("ds_write_b16_d16_hi v%d, v%d offset:%d" % (vT, vT + 2, L_QB + 16))
    a("ds_write_b16 v%d, v%d offset:%d" % (vT, vT + 3, L_QB + 32))
    a("ds_write_b16_d16_hi v%d, v%d offset:%d" % (vT, vT + 3, L_QB + 48))
    a("s_waitcnt lgkmcnt(0)")
    a.label("L_noqg")
    a("v_bfe_u32 v%d, v%d, 1, 1" % (vT, vL))
    a("v_lshlrev_b32 v%d, 8, v%d" % (vT, vT))
    a("v_lshrrev_b32 v%d, 2, v%d" % (vT + 1, vL))
    a("v_lshl_add_u32 v%d, v%d, 4, v%d" % (vT, vT + 1, vT))
    a("s_barrier")
    stamp("qready")
    a("ds_read_b128 %s, v%d offset:%d" % (vr(vQB), vT, L_QB))
    a("v_bfe_u32 v%d, v%d, 1, 1" % (vA2, vL))
    a("v_lshlrev_b32 v%d, 5, v%d" % (vA2, vA2))
    a("s_lshl_b32 s%d, s%d, 2" % (sT0, sW))
    a("v_add_u32 v%d, s%d, v%d" % (vA3, sT0, vA2))
    a("s_waitcnt lgkmcnt(0)")

    def qk_mfma(t):
        for u in range(4):
            k = vKR + 4 * (4 * t + u)
            a("v_mfma_f32_16x16x32_bf16 %s, %s, %s, 0" % (vr(k), vr(k), vr(vQB)))
    def qk_dpp(t):
        for r in range(4):
            for u in range(4):
                k = vKR + 4 * (4 * t + u) + r
                if r == 0:
                    a("v_mov_b32_dpp v%d, v%d %s row_mask:0xf bank_mask:0x%x" % (vS + t, k, ror(u, r), 1 << u))
                else:
                    a("v_add_f32_dpp v%d, v%d, v%d %s row_mask:0xf bank_mask:0x%x" % (vS + t, k, vS + t, ror(u, r), 1 << u))
    qk_mfma(0); qk_mfma(1); qk_dpp(0); qk_mfma(2); qk_dpp(1); qk_mfma(3); qk_dpp(2); qk_dpp(3)
    def rowreduce(op, v, tmp):
        a("v_mov_b32 v%d, v%d" % (tmp, v))
        a("v_permlane16_swap_b32 v%d, v%d" % (v, tmp))
        a("%s v%d, v%d, v%d" % (op, v, v, tmp))
        a("v_mov_b32 v%d, v%d" % (tmp, v))
        a("v_permlane32_swap_b32 v%d, v%d" % (v, tmp))
        a("%s v%d, v%d, v%d" % (op, v, v, tmp))
    def bankreduce(op, v):
        a("%s_dpp v%d, v%d, v%d row_ror:4 row_mask:0xf bank_mask:0xf" % (op, v, v, v))
        a("%s_dpp v%d, v%d, v%d row_ror:8 row_mask:0xf bank_mask:0xf" % (op, v, v, v))
    a("v_max3_f32 v%d, v%d, v%d, v%d" % (vT, vS, vS + 1, vS + 2))
    a("v_max_f32 v%d, v%d, v%d" % (vT, vT, vS + 3))
    bankreduce("v_max_f32", vT)
    rowreduce("v_max_f32", vT, vT + 1)
    a("ds_write_b32 v%d, v%d offset:%d" % (vA3, vT, L_MX))
    a("s_waitcnt lgkmcnt(0)")
    a("s_barrier")
    a("ds_read_b128 %s, v%d offset:%d" % (vr(vT), vA2, L_MX))
    a("ds_read_b128 %s, v%d offset:%d" % (vr(vT + 4), vA2, L_MX + 16))
    a("s_waitcnt lgkmcnt(0)")
    def max8(dst, b):
        a("v_max3_f32 v%d, v%d, v%d, v%d" % (b, b, b + 1, b + 2))
        a("v_max3_f32 v%d, v%d, v%d, v%d" % (b + 3, b + 3, b + 4, b + 5))
        a("v_max3_f32 v%d, v%d, v%d, v%d" % (b, b, b + 6, b + 7))
        a("v_max_f32 v%d, v%d, v%d" % (dst, b, b + 3))
        a("v_mul_f32 v%d, s%d, v%d" % (dst, sC, dst))
        a("v_and_b32 v%d, s%d, v%d" % (dst, sMASK, dst))
    max8(vM, vT)
    for t in range(4): a("v_fma_f32 v%d, v%d, s%d, -v%d" % (vS + t, vS + t, sC, vM))
    for t in range(4): a("v_exp_f32 v%d, v%d" % (vS + t, vS + t))
    a("v_add_f32 v%d, v%d, v%d" % (vT, vS, vS + 1))
    a("v_add_f32 v%d, v%d, v%d" % (vT + 1, vS + 2, vS + 3))
    a("v_add_f32 v%d, v%d, v%d" % (vT, vT, vT + 1))
    for t in range(4):
        a("v_cvt_pk_bf16_f32 v%d, v%d, v%d" % (vS + t, vS + t, vS + t))
    for t in range(4):
        a("v_and_b32 v%d, v%d, v%d" % (vS + t, vEM, vS + t))
    bankreduce("v_add_f32", vT)
    rowreduce("v_add_f32", vT, vT + 1)
    a("ds_write_b32 v%d, v%d offset:%d" % (vA3, vT, L_LS))
    a("s_waitcnt lgkmcnt(0)")
    a("s_barrier")
    stamp("soft")
    a("s_cmp_lt_u32 s%d, 6" % sW)
    a("s_cbranch_scc1 L_nopubprep")
    a("s_sub_u32 s%d, s%d, 6" % (sT0, sW))
    a("s_lshl_b32 s%d, s%d, 5" % (sT1, sT0))
    a("v_mov_b32 v%d, s%d" % (vT + 8, sT1))
    a("ds_read_b128 %s, v%d offset:%d" % (vr(vT), vT + 8, L_MX))
    a("ds_read_b128 %s, v%d offset:%d" % (vr(vT + 4), vT + 8, L_MX + 16))
    a("ds_read_b128 %s, v%d offset:%d" % (vr(vT + 12), vT + 8, L_LS))
    a("ds_read_b128 %s, v%d offset:%d" % (vr(vT + 16), vT + 8, L_LS + 16))
    a("s_waitcnt lgkmcnt(0)")
    max8(vPM, vT)
    a("v_pk_add_f32 %s, %s, %s" % (vr(vT + 12, 2), vr(vT + 12, 2), vr(vT + 14, 2)))
    a("v_pk_add_f32 %s, %s, %s" % (vr(vT + 16, 2), vr(vT + 16, 2), vr(vT + 18, 2)))
    a("v_pk_add_f32 %s, %s, %s" % (vr(vT + 12, 2), vr(vT + 12, 2), vr(vT + 16, 2)))
    a("v_add_f32 v%d, v%d, v%d" % (vPL, vT + 12, vT + 13))
    a("v_or_b32 v%d, v%d, v%d" % (vPM, vTAG, vPM))
    a("v_and_or_b32 v%d, v%d, s%d, v%d" % (vPL, vPL, sMASK, vTAG))
    a("v_lshrrev_b32 v%d, 4, v%d" % (vT, vL))
    a("v_lshlrev_b32 v%d, 4, v%d" % (vT, vT))
    a("v_and_b32 v%d, 1, v%d" % (vT + 1, vL))
    a("v_lshl_add_u32 v%d, v%d, 3, v%d" % (vT, vT + 1, vT))
    a("v_bfe_u32 v%d, v%d, 3, 1" % (vT + 1, vL))
    a("v_lshl_add_u32 v%d, v%d, 2, v%d" % (vT, vT + 1, vT))
    a("v_bfe_u32 v%d, v%d, 2, 1" % (vT + 1, vL))
    a("v_add_u32 v%d, v%d, v%d" % (vT, vT, vT + 1))
    a("s_lshl_b32 s%d, s%d, 1" % (sT1, sT0))
    a("v_add_u32 v%d, s%d, v%d" % (vT, sT1, vT))
    a("v_lshlrev_b32 v%d, 4, v%d" % (vT, vT))
    a("v_bfe_u32 v%d, v%d, 1, 1" % (vT + 1, vL))
    a("v_lshl_add_u32 v%d, v%d, 3, v%d" % (vA2, vT + 1, vT))
    a("s_lshl_b32 s%d, s%d, 14" % (sT1, sG))
    a("s_lshl_b32 s%d, s%d, 11" % (sT2, sMM))
    a("s_add_u32 s%d, s%d, s%d" % (sT1, sT1, sT2))
    a("s_lshl_b32 s%d, s%d, 10" % (sT2, sT0))
    a("s_add_u32 s%d, s%d, s%d" % (sT1, sT1, sT2))
    a("s_add_u32 s%d, s%d, 0x%x" % (sT1, sT1, WS_A))
    a("v_add_u32 v%d, s%d, v%d" % (vA3, sT1, vLA))
    a.label("L_nopubprep")
    a("s_cmp_lg_u32 s%d, 5" % sW)
    a("s_cbranch_scc1 L_nogprep")
    a("s_lshl_b32 s%d, s%d, 14" % (sT1, sG))
    a("s_lshl_b32 s%d, s%d, 8" % (sT2, sMM))
    a("s_add_u32 s%d, s%d, s%d" % (sT1, sT1, sT2))
    a("s_add_u32 s%d, s%d, 0x%x" % (sT1, sT1, WS_A))
    a("v_bfe_u32 v%d, v%d, 1, 1" % (vT, vL))
    a("v_lshlrev_b32 v%d, 2, v%d" % (vT, vT))
    a("v_and_b32 v%d, 1, v%d" % (vT + 1, vL))
    a("v_add_u32 v%d, v%d, v%d" % (vT, vT, vT + 1))
    a("v_lshlrev_b32 v%d, 11, v%d" % (vT, vT))
    a("v_lshrrev_b32 v%d, 2, v%d" % (vT + 1, vL))
    a("v_lshl_add_u32 v%d, v%d, 4, v%d" % (vT, vT + 1, vT))
    a("v_add_u32 v%d, s%d, v%d" % (vA3, sT1, vT))
    a.label("L_nogprep")

    remaining = len(seq) - pos[0]
    per_step = [0] * 16
    nV_left = sum(1 for k, _ in seq[pos[0]:] if k == "V")
    step = 0
    for _ in range(nV_left):
        per_step[step] += 1; step += 1
    wo_steps = 16 - step
    left = 8
    for s_ in range(step, 16):
        c = -(-left // (16 - s_))
        per_step[s_] += c; left -= c
    assert left == 0 and wo_steps > 0
    build_oh(vOH[0], vS, 0)
    for i in range(16):
        oh = vOH[i & 1]
        vm.wait("V%d" % i)
        if i == 15: stamp("V15")
        a("v_mfma_f32_16x16x32_bf16 %s, %s, %s, %s" % (vr(vACC), vr(vVR + 4 * i), vr(oh), "0" if i == 0 else vr(vACC)))
        for _ in range(per_step[i]): issue_next()
        if i < 15: build_oh(vOH[(i + 1) & 1], vS + ((i + 1) >> 2), (i + 1) & 3)
    assert pos[0] == len(seq)
    a("ds_write_b128 v%d, %s offset:%d" % (vA1, vr(vACC), L_RED2))
    a("s_waitcnt lgkmcnt(0)")
    a("s_barrier")
    stamp("barA")
    a("s_cmp_lt_u32 s%d, 5" % sW)
    a("s_cbranch_scc1 L_barB")
    a("s_cmp_eq_u32 s%d, 5" % sW)
    a("s_cbranch_scc1 L_gatherA")
    for w in range(8):
        a("ds_read_b64 %s, v%d offset:%d" % (vr(vR + 2 * w, 2), vA2, L_RED2 + 1024 * w))
    a("s_waitcnt lgkmcnt(0)")
    tree_add([vR + 2 * w for w in range(8)], 2)
    a("v_and_or_b32 v%d, v%d, s%d, v%d" % (vT, vR, sMASK, vTAG))
    a("v_and_or_b32 v%d, v%d, s%d, v%d" % (vT + 1, vR + 1, sMASK, vTAG))
    a("v_mov_b32 v%d, v%d" % (vT + 2, vPM))
    a("v_mov_b32 v%d, v%d" % (vT + 3, vPL))
    a("buffer_store_dwordx4 %s, v%d, %s, 0 offen %s" % (vr(vT), vA3, srd(sWS), cflags))
    stamp("apub")
    a("s_branch L_barB")
    a.label("L_gatherA")
    a("s_mov_b32 s%d, %d" % (sCNT, limit))
    a("s_movk_i32 s%d, 0x1000" % sOFF)
    a.label("L_pollA")
    a("buffer_load_dwordx4 %s, v%d, %s, 0 offen %s" % (vr(vG), vA3, srd(sWS), cflags))
    a("buffer_load_dwordx4 %s, v%d, %s, s%d offen %s" % (vr(vG + 4), vA3, srd(sWS), sOFF, cflags))
    a("s_waitcnt vmcnt(0)")
    for k in range(8): a("v_xor_b32 v%d, v%d, v%d" % (vG + k, vTAG, vG + k))
    a("v_or3_b32 v%d, v%d, v%d, v%d" % (vT, vG, vG + 1, vG + 2))
    a("v_or3_b32 v%d, v%d, v%d, v%d" % (vT + 1, vG + 3, vG + 4, vG + 5))
    a("v_or3_b32 v%d, v%d, v%d, v%d" % (vT, vT, vG + 6, vG + 7))
    a("v_or_b32 v%d, v%d, v%d" % (vT, vT, vT + 1))
    a("v_and_b32 v%d, 0xfff, v%d" % (vT, vT))
    a("v_cmp_ne_u32 vcc, 0, v%d" % vT)
    a("s_cbranch_vccz L_okA")
    a("s_sub_u32 s%d, s%d, 1" % (sCNT, sCNT))
    a("s_cbranch_scc0 L_pollA")
    a.label("L_okA")
    stamp("agot")
    o00, o01, m0, l0, o10, o11, m1, l1 = [vG + k for k in range(8)]
    X1 = "quad_perm:[1,0,3,2] row_mask:0xf bank_mask:0xf"
    a("v_max_f32 v%d, v%d, v%d" % (vT, m0, m1))
    a("v_max_f32_dpp v%d, v%d, v%d %s" % (vT, vT, vT, X1))
    a("v_sub_f32 v%d, v%d, v%d" % (m0, m0, vT))
    a("v_sub_f32 v%d, v%d, v%d" % (m1, m1, vT))
    a("v_exp_f32 v%d, v%d" % (m0, m0))
    a("v_exp_f32 v%d, v%d" % (m1, m1))
    a("v_mul_f32 v%d, v%d, v%d" % (l0, m0, l0))
    a("v_mul_f32 v%d, v%d, v%d" % (o00, m0, o00))
    a("v_mul_f32 v%d, v%d, v%d" % (o01, m0, o01))
    a("v_fmac_f32 v%d, v%d, v%d" % (l0, m1, l1))
    a("v_fmac_f32 v%d, v%d, v%d" % (o00, m1, o10))
    a("v_fmac_f32 v%d, v%d, v%d" % (o01, m1, o11))
    a("v_add_f32_dpp v%d, v%d, v%d %s" % (l0, l0, l0, X1))
    a("v_add_f32_dpp v%d, v%d, v%d %s" % (o00, o00, o00, X1))
    a("v_add_f32_dpp v%d, v%d, v%d %s" % (o01, o01, o01, X1))
    a("v_rcp_f32 v%d, v%d" % (l0, l0))
    a("v_mul_f32 v%d, v%d, v%d" % (o00, l0, o00))
    a("v_mul_f32 v%d, v%d, v%d" % (o01, l0, o01))
    a("v_cvt_pk_bf16_f32 v%d, v%d, v%d" % (vT, o00, o00))
    a("v_cvt_pk_bf16_f32 v%d, v%d, v%d" % (vT + 1, o01, o01))
    a("v_and_b32 v%d, v%d, v%d" % (vT, vEM, vT))
    a("v_and_b32 v%d, v%d, v%d" % (vT + 1, vEM, vT + 1))
    a("v_lshlrev_b32 v%d, 3, v%d" % (vT + 2, vL))
    a("ds_write_b64 v%d, %s offset:%d" % (vT + 2, vr(vT, 2), L_PB))
    a("s_waitcnt lgkmcnt(0)")
    a.label("L_barB")
    a("v_lshlrev_b32 v%d, 3, v%d" % (vT + 2, vL))
    a("s_barrier")
    stamp("barB")
    a("s_cmp_ge_u32 s%d, 5" % sW)
    a("s_cbranch_scc1 L_phase4")
    a("ds_read_b64 %s, v%d offset:%d" % (vr(vS, 2), vT + 2, L_PB))
    a("s_lshl_b32 s%d, s%d, 7" % (sT0, sBETA))
    a("s_add_u32 s%d, s%d, s%d" % (sT0, sT0, sRP))
    a("s_mul_i32 s%d, s%d, %d" % (sT0, sT0, BSTRIDE))
    a("s_add_u32 s%d, s%d, 0x%x" % (sT0, sT0, WS_B))
    a("v_add_u32 v%d, s%d, v%d" % (vA3, sT0, vA1))
    a("s_waitcnt vmcnt(0) lgkmcnt(0)")
    stamp("wo")
    build_oh(vOH[0], vS, 0)
    for i in range(8):
        oh = vOH[i & 1]
        if i < 7: build_oh(vOH[(i + 1) & 1], vS + ((i + 1) >> 2), (i + 1) & 3)
        a("v_mfma_f32_16x16x32_bf16 %s, %s, %s, %s" % (vr(vACC), vr(vKR + 4 * i), vr(oh), "0" if i == 0 else vr(vACC)))
    for r in range(4):
        a("v_and_or_b32 v%d, v%d, s%d, v%d" % (vT + r, vACC + r, sMASK, vTAG))
    a("buffer_store_dwordx4 %s, v%d, %s, 0 offen %s" % (vr(vT), vA3, srd(sWS), cflags))
    stamp("bpub")
    a.label("L_phase4")
    a("s_lshl_b32 s%d, s%d, 4" % (sRHO, sMM))
    a("s_add_u32 s%d, s%d, s%d" % (sRHO, sRHO, sKVH))
    a("s_cmp_ge_u32 s%d, 72" % sRHO)
    a("s_cbranch_scc1 L_exit")
    a("s_lshl_b32 s%d, s%d, 7" % (sT0, sBETA))
    a("s_lshl_b32 s%d, s%d, 4" % (sT1, sW))
    a("s_add_u32 s%d, s%d, s%d" % (sT0, sT0, sT1))
    a("s_mul_i32 s%d, s%d, %d" % (sT0, sT0, BSTRIDE))
    a("s_lshl_b32 s%d, s%d, 6" % (sT1, sRHO))
    a("s_add_u32 s%d, s%d, s%d" % (sT0, sT0, sT1))
    a("s_add_u32 s%d, s%d, 0x%x" % (sT0, sT0, WS_B))
    a("v_lshrrev_b32 v%d, 2, v%d" % (vT + 4, vL))
    a("v_mul_u32_u24 v%d, %d, v%d" % (vT + 4, BSTRIDE, vT + 4))
    a("v_and_b32 v%d, 3, v%d" % (vT + 5, vL))
    a("v_lshl_add_u32 v%d, v%d, 4, v%d" % (vT + 4, vT + 5, vT + 4))
    a("v_add_u32 v%d, s%d, v%d" % (vA2, sT0, vT + 4))
    a("v_lshrrev_b32 v%d, 4, v%d" % (vT + 4, vL))
    a("v_lshl_add_u32 v%d, v%d, 2, v%d" % (vT + 5, vT + 4, vT + 5))
    a("v_lshlrev_b32 v%d, 2, v%d" % (vT + 5, vT + 5))
    a("s_lshl_b32 s%d, s%d, 6" % (sT1, sW))
    a("v_add_u32 v%d, s%d, v%d" % (vT + 6, sT1, vT + 5))
    a("v_bfe_u32 v%d, v%d, 2, 2" % (vT + 7, vL))
    a("v_lshl_add_u32 v%d, v%d, 6, v%d" % (vT + 7, vT + 7, vT + 5))
    a("s_mov_b32 s%d, %d" % (sCNT, limit))
    a.label("L_pollB")
    a("buffer_load_dwordx4 %s, v%d, %s, 0 offen %s" % (vr(vG), vA2, srd(sWS), cflags))
    a("s_waitcnt vmcnt(0)")
    for k in range(4): a("v_xor_b32 v%d, v%d, v%d" % (vG + k, vTAG, vG + k))
    a("v_or3_b32 v%d, v%d, v%d, v%d" % (vT, vG, vG + 1, vG + 2))
    a("v_or_b32 v%d, v%d, v%d" % (vT, vT, vG + 3))
    a("v_and_b32 v%d, 0xfff, v%d" % (vT, vT))
    a("v_cmp_ne_u32 vcc, 0, v%d" % vT)
    a("s_cbranch_vccz L_okB")
    a("s_sub_u32 s%d, s%d, 1" % (sCNT, sCNT))
    a("s_cbranch_scc0 L_pollB")
    a.label("L_okB")
    stamp("bgot")
    a("v_permlane32_swap_b32 v%d, v%d" % (vG, vG + 1))
    a("v_permlane32_swap_b32 v%d, v%d" % (vG + 2, vG + 3))
    a("v_add_f32 v%d, v%d, v%d" % (vG, vG, vG + 1))
    a("v_add_f32 v%d, v%d, v%d" % (vG + 2, vG + 2, vG + 3))
    a("v_permlane16_swap_b32 v%d, v%d" % (vG, vG + 2))
    a("v_add_f32 v%d, v%d, v%d" % (vG, vG, vG + 2))
    bankreduce("v_add_f32", vG)
    a("ds_write_b32 v%d, v%d offset:%d" % (vT + 6, vG, L_FIN))
    a("s_waitcnt lgkmcnt(0)")
    a("s_barrier")
    a("s_cmp_lg_u32 s%d, 0" % sW)
    a("s_cbranch_scc1 L_exit")
    a("ds_read2_b32 %s, v%d offset0:%d offset1:%d" % (vr(vG, 2), vT + 7, 0, 64) if False else
      "ds_read_b32 v%d, v%d offset:%d" % (vG, vT + 7, L_FIN))
    a("ds_read_b32 v%d, v%d offset:%d" % (vG + 1, vT + 7, L_FIN + 256))
    a("s_lshr_b32 s%d, s%d, 4" % (sT0, sRHO))
    a("s_lshl_b32 s%d, s%d, 7" % (sT0, sT0))
    a("s_bfe_u32 s%d, s%d, 0x20002" % (sT1, sRHO))
    a("s_lshl_b32 s%d, s%d, 5" % (sT1, sT1))
    a("s_add_u32 s%d, s%d, s%d" % (sT0, sT0, sT1))
    a("s_and_b32 s%d, s%d, 3" % (sT1, sRHO))
    a("s_lshl_b32 s%d, s%d, 1" % (sT1, sT1))
    a("s_add_u32 s%d, s%d, s%d" % (sT0, sT0, sT1))
    a("s_mul_i32 s%d, s%d, 576" % (sT1, sBETA))
    a("s_add_u32 s%d, s%d, s%d" % (sT0, sT0, sT1))
    a("v_bfe_u32 v%d, v%d, 4, 1" % (vT, vL))
    a("v_lshlrev_b32 v%d, 4, v%d" % (vT, vT))
    a("v_lshrrev_b32 v%d, 5, v%d" % (vT + 1, vL))
    a("v_lshl_add_u32 v%d, v%d, 3, v%d" % (vT, vT + 1, vT))
    a("v_bfe_u32 v%d, v%d, 1, 1" % (vT + 1, vL))
    a("v_mul_u32_u24 v%d, 1152, v%d" % (vT + 1, vT + 1))
    a("v_and_b32 v%d, 1, v%d" % (vT + 2, vL))
    a("v_add3_u32 v%d, v%d, v%d, v%d" % (vT, vT, vT + 1, vT + 2))
    a("v_add_u32 v%d, s%d, v%d" % (vT, sT0, vT))
    a("v_lshlrev_b32 v%d, 1, v%d" % (vT, vT))
    a("v_bfe_u32 v%d, v%d, 2, 2" % (vT + 1, vL))
    a("v_cmp_eq_u32 vcc, 0, v%d" % (vT + 1))
    a("v_mov_b32 v%d, 0x%x" % (vT + 2, OOB))
    a("v_cndmask_b32 v%d, v%d, v%d, vcc" % (vT, vT + 2, vT))
    a("s_waitcnt lgkmcnt(0)")
    a("v_add_f32 v%d, v%d, v%d" % (vG, vG, vG + 1))
    bankreduce("v_add_f32", vG)
    a("v_cvt_pk_bf16_f32 v%d, v%d, v%d" % (vG, vG, vG))
    a("buffer_store_short v%d, v%d, %s, 0 offen" % (vG, vT, srd(sOUT)))
    a("s_cmp_lg_u32 s%d, 0" % sRHO)
    a("s_cbranch_scc1 L_exit")
    a("s_lshl_b32 s%d, s%d, 8" % (sT0, sBETA))
    a("v_mov_b32 v%d, s%d" % (vT + 3, sT0))
    a("v_cmp_eq_u32 vcc, 0, v%d" % vL)
    a("v_cndmask_b32 v%d, v%d, v%d, vcc" % (vT + 3, vT + 2, vT + 3))
    a("buffer_store_dword v%d, v%d, %s, 0 offen %s" % (vTAG, vT + 3, srd(sWS), cflags))
    a.label("L_exit")
    if spin:
        a("s_cmp_lg_u32 s2, 0"); a("s_cbranch_scc1 L_end")
        a("s_cmp_lg_u32 s%d, 0" % sW); a("s_cbranch_scc1 L_end")
        a.label("L_spin")
        a("s_memrealtime s[58:59]"); a("s_waitcnt lgkmcnt(0)")
        a("s_sub_u32 s58, s58, s56"); a("s_cmp_lt_u32 s58, %d" % spin); a("s_cbranch_scc1 L_spin")
    if stamps:
        stamp("end")
        a("s_cmp_eq_u32 s%d, 0" % sW); a("s_cbranch_scc0 L_st5")
        flush_stamps(0, ["start", "karg", "wq0", "wq4", "qpub", "K15", "qready", "soft", "V15", "barA", "barB", "wo", "bpub", "bgot", "end"])
        a("s_branch L_end")
        a.label("L_st5")
        a("s_cmp_eq_u32 s%d, 5" % sW); a("s_cbranch_scc0 L_st6")
        flush_stamps(16, ["agot", "barB", "bgot", "end"])
        a("s_branch L_end")
        a.label("L_st6")
        a("s_cmp_eq_u32 s%d, 6" % sW); a("s_cbranch_scc0 L_end")
        flush_stamps(24, ["qpub", "K15", "V15", "apub", "bgot", "end"])
    a.label("L_end")
    a("s_endpgm")
    a.raw("L_codeend:")
    a.raw('.section .rodata,"a"')
    a.raw(".p2align 6")
    a.raw(".amdhsa_kernel " + KN)
    a.raw("  .amdhsa_next_free_vgpr 256")
    a.raw("  .amdhsa_next_free_sgpr 102")
    a.raw("  .amdhsa_accum_offset 256")
    a.raw("  .amdhsa_group_segment_fixed_size 0")
    a.raw("  .amdhsa_kernarg_size 104")
    a.raw("  .amdhsa_user_sgpr_count 2")
    a.raw("  .amdhsa_user_sgpr_kernarg_segment_ptr 1")
    a.raw("  .amdhsa_system_sgpr_workgroup_id_x 1")
    a.raw(".end_amdhsa_kernel")
    return a.text(), a.nops

if __name__ == "__main__":
    import build, ast
    out = sys.argv[1]
    kw = {}
    for x in sys.argv[2:]:
        k, v = x.split("=", 1)
        try: kw[k] = ast.literal_eval(v)
        except Exception: kw[k] = v
    t, nops = gen(**kw)
    open(out, "w").write(t)
    print("nops inserted:", nops, "lines:", t.count("\n"))
    build.build(out)
```

```python
import re

TRANS = ("v_exp_f32", "v_log_f32", "v_rcp_f32", "v_rsq_f32", "v_sqrt_f32", "v_sin_f32", "v_cos_f32")

def regs_of(tok):
    tok = tok.strip()
    neg = tok.lstrip("-")
    if neg.startswith("abs(") and neg.endswith(")"): neg = neg[4:-1]
    m = re.fullmatch(r"([vsa])(\d+)", neg)
    if m: return [(m.group(1), int(m.group(2)))]
    m = re.fullmatch(r"([vsa])\[(\d+):(\d+)\]", neg)
    if m: return [(m.group(1), i) for i in range(int(m.group(2)), int(m.group(3)) + 1)]
    if neg == "vcc": return [("s", "vcc")]
    if neg == "exec": return [("s", "exec")]
    if neg == "m0": return [("s", "m0")]
    return []

class Rec:
    __slots__ = ("kind", "w", "r", "text", "dpp", "trans", "perm", "srcA", "srcB", "srcC", "dppsrc", "store_data", "sw", "sr", "states")

def parse(text):
    t = text.split(";")[0].strip()
    m = re.match(r"(\S+)\s*(.*)", t)
    op, rest = m.group(1), m.group(2)
    ops = [x.strip() for x in re.split(r",(?![^\[]*\])", rest)] if rest else []
    mods = ""
    if ops:
        parts = ops[-1].split(None, 1)
        ops[-1] = parts[0] if parts else ""
        mods = parts[1] if len(parts) > 1 else ""
    r = Rec()
    r.text = text; r.dpp = False; r.trans = False; r.perm = False
    r.w = []; r.r = []; r.srcA = []; r.srcB = []; r.srcC = []; r.dppsrc = []; r.store_data = []; r.sw = []; r.sr = []
    r.states = 1
    R = [regs_of(o) for o in ops]
    def V(x): return [a for a in x if a[0] in "va"]
    def S(x): return [a for a in x if a[0] == "s"]
    if op == "s_nop":
        r.kind = "nop"; r.states = int(ops[0], 0) + 1
    elif op.startswith("v_mfma"):
        r.kind = "mfma"; r.w = V(R[0]); r.srcA = V(R[1]); r.srcB = V(R[2]); r.srcC = V(R[3]); r.r = r.srcA + r.srcB + r.srcC
    elif op.startswith("v_"):
        r.kind = "valu"
        base = re.sub(r"_(e32|e64|dpp|sdwa)$", "", op)
        r.trans = base in TRANS
        r.dpp = ("row_" in mods) or ("quad_perm" in mods)
        if base.startswith("v_permlane"):
            r.perm = True; r.w = V(R[0]) + V(R[1]); r.r = list(r.w)
        elif base.startswith("v_cmp"):
            r.sw = S(R[0]); r.r = sum((V(x) for x in R[1:]), []); r.sr = sum((S(x) for x in R[1:]), [])
        elif base in ("v_readfirstlane_b32", "v_readlane_b32"):
            r.sw = S(R[0]); r.r = V(R[1]); r.kind = "valu"; r.perm = False
            r.trans = False
            r.sr = sum((S(x) for x in R[2:]), [])
            r.dppsrc = []
            r.text = text
            r.kind = "readlane"
        else:
            r.w = V(R[0]); r.r = sum((V(x) for x in R[1:]), []); r.sr = sum((S(x) for x in R[1:]), [])
            if base in ("v_add_co_u32", "v_addc_co_u32", "v_sub_co_u32"):
                r.sw = S(R[1]); r.sr = sum((S(x) for x in R[2:]), [])
            if base.startswith("v_cndmask") and len(ops) == 4: pass
            if base in ("v_fmac_f32", "v_dot2c_f32_bf16") or r.dpp: r.r = r.r + r.w
            if r.dpp: r.dppsrc = V(R[1])
    elif op.startswith("buffer_") or op.startswith("global_"):
        r.kind = "vmem"
        if "load" in op and re.search(r"\blds\b", mods):
            r.r = sum((V(x) for x in R), []); r.sr = sum((S(x) for x in R), []) + [("s", "m0")]
        elif "load" in op:
            r.w = V(R[0]); r.r = sum((V(x) for x in R[1:]), []); r.sr = sum((S(x) for x in R[1:]), [])
        else:
            r.r = sum((V(x) for x in R), []); r.sr = sum((S(x) for x in R), [])
            if op.endswith("x4") or op.endswith("x3"):
                r.store_data = V(R[0]) if op.startswith("buffer_") else V(R[1])
    elif op.startswith("ds_"):
        r.kind = "ds"
        if op.startswith("ds_read") or op.startswith("ds_bpermute") or op.startswith("ds_swizzle"):
            r.w = V(R[0]); r.r = sum((V(x) for x in R[1:]), [])
        else:
            r.r = sum((V(x) for x in R), [])
    else:
        r.kind = "salu"
        if ops and not op.startswith(("s_cmp", "s_cbranch", "s_branch", "s_waitcnt", "s_barrier", "s_endpgm", "s_setprio")):
            r.sw = S(R[0])
        r.sr = sum((S(x) for x in R[1:]), [])
    return r

def need(prev, cur):
    n = 0
    pw = set(prev.w); cr = set(cur.r); cw = set(cur.w)
    if prev.kind == "valu":
        if pw:
            if cur.kind == "valu" and cur.dpp and pw & set(cur.dppsrc): n = max(n, 2)
            if cur.kind == "valu" and cur.perm and pw & cr: n = max(n, 2)
            if cur.kind == "mfma" and pw & cr: n = max(n, 2)
            if cur.kind == "readlane" and pw & cr: n = max(n, 1)
            if prev.trans and cur.kind in ("valu",) and not cur.trans and pw & (cr | cw): n = max(n, 1)
            if prev.trans and cur.kind == "valu" and cur.trans and pw & cr: n = max(n, 1)
    if prev.kind in ("valu", "readlane") and prev.sw:
        sw = set(prev.sw)
        if cur.kind in ("valu", "readlane") and sw & set(cur.sr): n = max(n, 2)
        if cur.kind == "valu" and "cndmask" in cur.text and ("s", "vcc") in sw: n = max(n, 2)
        if cur.kind == "vmem" and sw & set(cur.sr): n = max(n, 5)
        if cur.kind == "salu" and sw & set(cur.sr): n = max(n, 1)
    if prev.kind == "mfma":
        if cur.kind == "mfma":
            if pw & (set(cur.srcA) | set(cur.srcB)): n = max(n, 8)
            if pw & set(cur.srcC):
                if list(prev.w) == list(cur.srcC): pass
                else: n = max(n, 6)
            if pw & cw and list(prev.w) != list(cur.srcC): n = max(n, 8)
        else:
            if pw & (cr | cw): n = max(n, 8)
        if cur.kind in ("valu", "readlane") and set(prev.srcC) & cw: n = max(n, 3)
    if prev.kind == "salu" and ("s", "m0") in prev.sw and cur.kind == "vmem" and ("s", "m0") in cur.sr: n = max(n, 1)
    if prev.kind == "vmem" and prev.store_data:
        if set(prev.store_data) & cw: n = max(n, 2)
    return n

class Asm:
    def __init__(self):
        self.lines = []
        self.hist = [[]]
        self.pending = {}
        self.nops = 0
    def raw(self, s):
        self.lines.append(s)
    def _pad(self, rec):
        pad = 0
        for h in self.hist:
            d = 0
            for p in reversed(h):
                n = need(p, rec)
                if n > d: pad = max(pad, n - d)
                d += p.states
                if d > 20: break
        return pad
    def __call__(self, text):
        for t in text.strip().split("\n"):
            t = t.strip()
            if not t: continue
            if t.startswith(";"):
                self.lines.append("    " + t); continue
            rec = parse(t)
            pad = self._pad(rec)
            while pad > 0:
                k = min(pad, 16)
                nr = parse("s_nop %d" % (k - 1))
                self.lines.append("    s_nop %d" % (k - 1)); self.nops += 1
                for h in self.hist: h.append(nr)
                pad -= k
            self.lines.append("    " + t)
            for h in self.hist:
                h.append(rec)
                if len(h) > 40: del h[:-40]
            op = t.split()[0]
            if op.startswith("s_cbranch") or op == "s_branch":
                lab = t.split()[1]
                self.pending.setdefault(lab, []).extend([list(h) for h in self.hist])
                if op == "s_branch": self.hist = []
            if op == "s_endpgm": self.hist = []
    def label(self, name):
        self.lines.append(name + ":")
        hs = self.hist + self.pending.pop(name, [])
        uniq = {}
        for h in hs: uniq[tuple(id(x) for x in h[-24:])] = h
        self.hist = list(uniq.values()) or [[]]
    def text(self):
        return "\n".join(self.lines) + "\n"

class VM:
    def __init__(self, a):
        self.a = a; self.ops = []
    def issue(self, name, text):
        self.a(text); self.ops.append(name)
    def wait(self, name):
        i = len(self.ops) - 1 - self.ops[::-1].index(name)
        n = len(self.ops) - 1 - i
        assert n <= 63
        self.a("s_waitcnt vmcnt(%d)" % n)
        self.ops = self.ops[i + 1:]
    def done(self, name):
        return name not in self.ops
    def wait_all(self):
        self.a("s_waitcnt vmcnt(0)"); self.ops = []
```

```python
import sys
from asmlib import Asm, VM

KN = "concat_heads__sliding_block_cached__sliding_block_cached__decode_kernel"

HEADER = """; Fused decode step for two independent branches (A, B): one launch, 256 workgroups of 8 waves (one per CU).
; Kernarg (ptrs): 0 A_x 8 A_k 16 A_v 24 A_wq 32 A_wo 40 B_x 48 B_k 56 B_v 64 B_wq 72 B_wo 80 out 88 debug 96 ws
"""

WS_BYTES = 287314432
WS_Q = 0x10000
WS_A = 0x50000
WS_B = 0xD0000
BSTRIDE = 5120
STAMP_OFF = 0x10000000
OOB = 0x80000000
L_RED1 = 0
L_RED2 = 8192
L_QB = 16384
L_MX = 16896
L_LS = 16960
L_PB = 17024
L_FIN = 17536
L_CNT = 18048
L_FLAG = 18064
L_WO = 18432
L_DUMMY = L_WO + 36864
LDS_BYTES = L_DUMMY + 1024

sW = 3
sBETA = 4; sKO = 5; sMM = 6; sKVH = 7
sG = 8
sT0 = 9; sT1 = 10; sT2 = 11; sT3 = 12
sEP = 13; sTAG = 14; sCNT = 15
sMASK = 16; sC = 17; sRHO = 18; sRP = 19; sOFF = 20; sH = 22
sPGS = [21, 23, 56, 57]
sX = 24; sK = 28; sV = 32; sWQ = 36; sWO = 40; sWS = 44; sOUT = 48; sCODE = 52
sFLAG = 5
sM0A = 24; sM0B = 25; sXCC = 26
sSTAMP = 58
def srd(b): return "s[%d:%d]" % (b, b + 3)
def sp(b): return "s[%d:%d]" % (b, b + 1)

vL = 0
vKoff = 1; vVoff = 2; vWQoff = 3; vWQ5 = 4; vWOoff = 5; vXoff = 6
vE16 = 7; vEM = 8; vQG = 9; vQP = 10; vCD = 11
vX0 = 12; vX1 = 13; vTAG = 14; vLA = 15
vOH = [16, 20]
vACC = 24
vQB = 28
vS = 32
vT = 36
vZERO = 54; vTAGQ = 55
vLSUM = 56; vM = 57; vPM = 58; vF = 59
vKR = 64
vVR = 128
vG = 192
vR = 208
vDUM = 240
vA1 = 60; vQBw = 61; vQBr = 62; vMXr = 63
vMXw = 244; vPubR = 245; vPubW = 246; vPubH = 247; vGA = 248; vPB = 249; vBP = 250; vBG = 251
vFw = 252; vFr = 253; vOut = 254; vEp = 255
vWO5 = 3; vWOr = 4

def vr(b, n=4): return "v[%d:%d]" % (b, b + n - 1)
def ror(dst_bank, src_bank):
    n = (4 * (dst_bank - src_bank)) % 16
    return "quad_perm:[0,1,2,3]" if n == 0 else "row_ror:%d" % n

def gen(W0=2, WK=4, XB=2, WV=4, GK=6, WOA=2, WOP=8, BS=13, ldflags="nt", stamps=False, limit=200000, codepf=True, cflags="sc1",
        dbgst=False, dbgwg=0, outflags="", rot=4, qsync="last", fast=True, QGW=0):
    a = Asm(); vm = VM(a)
    nst = [0]
    stamp_regs = []
    def stamp(name):
        if not stamps: return
        r = sSTAMP + 2 * nst[0]; nst[0] += 1
        assert r + 1 <= 101, "too many stamps"
        stamp_regs.append((name, r))
        a("s_memrealtime %s" % sp(r))
    def stamp_val(name, sreg):
        if not stamps: return
        r = sSTAMP + 2 * nst[0]; nst[0] += 1
        assert r + 1 <= 101
        stamp_regs.append((name, r))
        a("s_waitcnt lgkmcnt(0)")
        a("s_sub_u32 s%d, %d, s%d" % (r, limit, sreg))
        a("s_mul_i32 s%d, s%d, 100" % (r, r))
        a("s_add_u32 s%d, s%d, s%d" % (r, r, sSTAMP))
        a("s_addc_u32 s%d, s%d, 0" % (r + 1, sSTAMP + 1))
    def flush_dbg(names):
        a("s_cmp_lg_u32 s2, %d" % dbgwg); a("s_cbranch_scc1 L_end")
        a("s_load_dwordx2 %s, s[0:1], 88" % sp(sCODE))
        a("s_waitcnt lgkmcnt(0)")
        a("s_mov_b32 s%d, 256" % (sCODE + 2)); a("s_mov_b32 s%d, 0x20000" % (sCODE + 3))
        a("v_cmp_ne_u32 vcc, 0, v%d" % vL)
        a("v_mov_b32 v%d, 0" % vT)
        a("v_mov_b32 v%d, 0x%x" % (vT + 1, OOB))
        a("v_cndmask_b32 v%d, v%d, v%d, vcc" % (vT, vT, vT + 1))
        for idx, nm in enumerate(names):
            r = dict(stamp_regs)[nm]
            a("s_sub_u32 s%d, s%d, s%d" % (sT0, r, dict(stamp_regs)["start"]))
            a("v_mov_b32 v%d, s%d" % (vT + 2, sT0))
            a("buffer_store_dword v%d, v%d, %s, 0 offen offset:%d" % (vT + 2, vT, srd(sCODE), 4 * idx))
            a("s_nop 1")
    def flush_stamps(first_idx, names):
        if dbgst:
            if first_idx == 0: flush_dbg(["start", "karg", "wq0", "wq4", "K15", "qready", "soft", "V15", "barA", "barB", "bpub", "bgot", "end"])
            return
        a("s_waitcnt lgkmcnt(0)")
        a("s_lshl_b32 s%d, s2, 8" % sT0)
        a("s_add_u32 s%d, s%d, 0x%x" % (sT0, sT0, STAMP_OFF))
        a("v_mov_b32 v%d, s%d" % (vT, sT0))
        a("v_cmp_ne_u32 vcc, 0, v%d" % vL)
        a("v_mov_b32 v%d, 0x%x" % (vT + 1, OOB))
        a("v_cndmask_b32 v%d, v%d, v%d, vcc" % (vT, vT, vT + 1))
        idx = first_idx
        for nm in names:
            r = dict(stamp_regs)[nm]
            a("v_mov_b32 v%d, s%d" % (vT + 2, r)); a("v_mov_b32 v%d, s%d" % (vT + 3, r + 1))
            a("buffer_store_dwordx2 %s, v%d, %s, 0 offen offset:%d" % (vr(vT + 2, 2), vT, srd(sWS), 8 * idx))
            a("s_nop 1")
            idx += 1
        assert idx <= 32

    a.raw(HEADER.rstrip())
    a.raw("; @launch grid=(256,1,1) block=(512,1,1) lds=%d" % LDS_BYTES)
    a.raw('.amdgcn_target "amdgcn-amd-amdhsa--gfx950"')
    a.raw(".text"); a.raw(".globl " + KN); a.raw(".p2align 8"); a.raw(".type %s,@function" % KN)
    a.raw(KN + ":")
    a.label("L_begin")
    a("s_cmp_ge_u32 s2, 256")
    a("s_cbranch_scc1 L_end")
    if stamps:
        for r_ in range(sSTAMP + 2, 102, 2): a("s_mov_b64 %s, 0" % sp(r_))
        a("s_memrealtime %s" % sp(sSTAMP)); stamp_regs.append(("start", sSTAMP)); nst[0] = 1
    a("s_bfe_u32 s%d, s2, 0x10004" % sBETA)
    a("s_mul_i32 s%d, s%d, 40" % (sKO, sBETA))
    a("s_load_dwordx2 %s, s[0:1], s%d offset:24" % (sp(sWQ), sKO))
    a("s_load_dwordx2 %s, s[0:1], s%d" % (sp(sX), sKO))
    a("s_load_dwordx2 %s, s[0:1], s%d offset:8" % (sp(sK), sKO))
    a("s_load_dwordx2 %s, s[0:1], s%d offset:16" % (sp(sV), sKO))
    a("s_load_dwordx2 %s, s[0:1], s%d offset:32" % (sp(sWO), sKO))
    a("s_load_dwordx2 %s, s[0:1], 96" % sp(sWS))
    a("s_load_dwordx2 %s, s[0:1], 80" % sp(sOUT))
    a("v_lshrrev_b32 v%d, 6, v0" % vT)
    a("v_and_b32 v%d, 63, v0" % vL)
    a("v_readfirstlane_b32 s%d, v%d" % (sW, vT))
    a("s_lshr_b32 s%d, s2, 5" % sMM)
    a("s_and_b32 s%d, s2, 15" % sKVH)
    a("s_and_b32 s%d, s2, 31" % sG)
    for (b, n) in ((sX, 2304), (sWQ, 0x480000), (sK, 0x4000000), (sV, 0x4000000), (sWO, 0x480000), (sWS, WS_BYTES), (sOUT, 4608)):
        a("s_mov_b32 s%d, 0x%x" % (b + 2, n)); a("s_mov_b32 s%d, 0x20000" % (b + 3))
    vg = vT; vn = vT + 1; vbank = vT + 2; vhb = vT + 3; ve = vT + 4; vt0 = vT + 5; vt1 = vT + 6; vt2 = vT + 7
    a("v_lshrrev_b32 v%d, 4, v%d" % (vg, vL))
    a("v_and_b32 v%d, 15, v%d" % (vn, vL))
    a("v_bfe_u32 v%d, v%d, 2, 2" % (vbank, vL))
    a("v_bfe_u32 v%d, v%d, 1, 1" % (vhb, vL))
    a("v_and_b32 v%d, 1, v%d" % (ve, vL))
    a("s_and_b32 s%d, s%d, 3" % (sT0, sMM))
    a("s_mul_i32 s%d, s%d, 144" % (sT1, sT0))
    a("s_lshl_b32 s%d, s%d, 2" % (sT2, sW))
    a("s_add_u32 s%d, s%d, s%d" % (sT1, sT1, sT2))
    a("s_lshr_b32 s%d, s%d, 2" % (sT2, sMM))
    a("s_lshl_b32 s%d, s%d, 1" % (sT3, sKVH))
    a("s_add_u32 s%d, s%d, s%d" % (sT3, sT3, sT2))
    a("s_lshl_b32 s%d, s%d, 8" % (sT3, sT3))
    a("v_add_u32 v%d, s%d, v%d" % (vt0, sT1, vg))
    a("v_lshlrev_b32 v%d, 13, v%d" % (vt0, vt0))
    a("v_lshl_add_u32 v%d, v%d, 4, v%d" % (vt0, vn, vt0))
    a("v_add_u32 v%d, s%d, v%d" % (vWQoff, sT3, vt0))
    a("s_cmp_lt_u32 s%d, 4" % sW)
    a("s_cselect_b32 s%d, 0, 0x%x" % (sT3, OOB))
    a("v_add_u32 v%d, s%d, v%d" % (vWQ5, sT3, vWQoff))
    a("v_mul_u32_u24 v%d, 576, v%d" % (vt0, vhb))
    a("v_lshl_add_u32 v%d, v%d, 5, v%d" % (vt0, vbank, vt0))
    a("v_add3_u32 v%d, v%d, v%d, s%d" % (vt0, vt0, vg, sT1))
    a("v_lshlrev_b32 v%d, 1, v%d" % (vXoff, vt0))
    a("s_waitcnt lgkmcnt(0)")
    stamp("karg")

    nbefore = 5 - WOA
    seq = [("wq", i) for i in range(5)] + [("K", i) for i in range(16)]
    for i in range(16):
        if i == WOP: seq += [("wo", t) for t in range(nbefore)]
        seq.append(("V", i))
    seq += [("wo", t) for t in range(nbefore, 5)]
    idx_of = {"%s%d" % x: n for n, x in enumerate(seq)}
    pos = [0]
    WOROW = [0, 4, 16, 20, 8, 12, 24, 28]
    def issue_next():
        if pos[0] >= len(seq): return False
        kind, i = seq[pos[0]]; pos[0] += 1
        nm = "%s%d" % (kind, i)
        if kind == "wq":
            so = "0"
            if i:
                a("s_mov_b32 s%d, 0x%x" % (sOFF, i * 0x40000)); so = "s%d" % sOFF
            vm.issue(nm, "buffer_load_dwordx4 %s, v%d, %s, %s offen %s" % (vr(vVR + 4 * i), vWQ5 if i == 4 else vWQoff, srd(sWQ), so, ldflags))
        elif kind in ("K", "V"):
            base = vKR if kind == "K" else vVR
            vm.issue(nm, "buffer_load_dwordx4 %s, v%d, %s, s%d offen offset:%d %s" % (vr(base + 4 * i), vKoff if kind == "K" else vVoff,
                     srd(sK if kind == "K" else sV), sPGS[i >> 2], (i & 3) * 1024, ldflags))
        else:
            if i < 4:
                a("s_mov_b32 m0, s%d" % sM0A)
                vm.issue(nm, "buffer_load_dwordx4 v%d, %s, 0 offen offset:%d %s lds" % (vWOoff, srd(sWO), i * 1024, ldflags))
            else:
                a("s_mov_b32 m0, s%d" % sM0B)
                vm.issue(nm, "buffer_load_dwordx4 v%d, %s, 0 offen %s lds" % (vWO5, srd(sWO), ldflags))
        return True
    def pace(name, win):
        n = idx_of[name]
        while pos[0] < min(len(seq), n + 1 + win): issue_next()
    for _ in range(5): issue_next()
    vm.issue("x0", "buffer_load_ushort v%d, v%d, %s, 0 offen" % (vX0, vXoff, srd(sX)))
    vm.issue("x1", "buffer_load_ushort v%d, v%d, %s, 0 offen offset:256" % (vX1, vXoff, srd(sX)))
    a("s_lshl_b32 s%d, s%d, 8" % (sT3, sBETA))
    a("s_load_dword s%d, %s, s%d" % (sEP, sp(sWS), sT3))
    a("s_lshl_b32 s%d, s%d, 4" % (sT3, sT2))
    a("s_add_u32 s%d, s%d, s%d" % (sT3, sT3, sKVH))
    a("s_lshl_b32 s%d, s%d, 21" % (sT3, sT3))
    a("s_lshl_b32 s%d, s%d, 17" % (sT0, sT0))
    a("s_add_u32 s%d, s%d, s%d" % (sT3, sT3, sT0))
    a("s_add_u32 s%d, s%d, 0x180000" % (sT3, sT3))
    a("s_mul_i32 s%d, s%d, %d" % (sT0, sMM, rot))
    a("s_add_u32 s%d, s%d, s%d" % (sT0, sT0, sW))
    for t in range(4):
        a("s_add_u32 s%d, s%d, %d" % (sPGS[t], sT0, 8 * t))
        a("s_and_b32 s%d, s%d, 31" % (sPGS[t], sPGS[t]))
        a("s_lshl_b32 s%d, s%d, 12" % (sPGS[t], sPGS[t]))
    a("v_lshlrev_b32 v%d, 4, v%d" % (vLA, vL))
    a("v_add_u32 v%d, s%d, v%d" % (vVoff, sT3, vLA))
    a("v_and_b32 v%d, 3, v%d" % (vt0, vL))
    a("v_lshlrev_b32 v%d, 4, v%d" % (vt0, vt0))
    a("v_lshl_add_u32 v%d, v%d, 6, v%d" % (vt0, vg, vt0))
    a("v_lshl_add_u32 v%d, v%d, 8, v%d" % (vt0, vbank, vt0))
    a("v_add_u32 v%d, s%d, v%d" % (vKoff, sT3, vt0))
    if codepf:
        a("s_getpc_b64 %s" % sp(sCODE))
        a.label("L_pc")
        a("s_sub_u32 s%d, s%d, L_pc-L_begin" % (sCODE, sCODE))
        a("s_subb_u32 s%d, s%d, 0" % (sCODE + 1, sCODE + 1))
        a("s_mov_b32 s%d, L_codeend-L_begin" % (sCODE + 2))
        a("s_mov_b32 s%d, 0x20000" % (sCODE + 3))
        a("s_cmp_eq_u32 s%d, s%d" % (sW, sMM))
        a("s_cselect_b32 s%d, 0, 0x%x" % (sT0, OOB))
        a("s_lshl_b32 s%d, s%d, 10" % (sT1, sMM))
        a("s_add_u32 s%d, s%d, s%d" % (sT0, sT0, sT1))
        a("v_add_u32 v%d, s%d, v%d" % (vCD, sT0, vLA))
        vm.issue("code", "buffer_load_dwordx4 %s, v%d, %s, 0 offen" % (vr(vDUM), vCD, srd(sCODE)))
    pace("wq4", W0)
    a("v_mov_b32 v%d, 0" % vZERO)
    a("s_cmp_lg_u32 s%d, 0" % sW)
    a("s_cbranch_scc1 L_noinit")
    a("ds_write_b32 v%d, v%d offset:%d" % (vZERO, vZERO, L_CNT))
    a("ds_write_b32 v%d, v%d offset:%d" % (vZERO, vZERO, L_FLAG))
    a.label("L_noinit")
    a("s_mov_b32 s%d, 0xfffff000" % sMASK)
    a("s_mov_b32 s%d, 0x3e0293ee" % sC)
    a("v_lshlrev_b32 v%d, 4, v%d" % (vE16, ve))
    a("v_mov_b32 v%d, 0xffff" % vEM)
    a("v_lshlrev_b32 v%d, v%d, v%d" % (vEM, vE16, vEM))
    for s_ in vOH:
        for r in range(4): a("v_mov_b32 v%d, 0" % (s_ + r))
    a("v_mov_b32 v%d, 0x%x" % (vt2, OOB))
    a("s_lshl_b32 s%d, s%d, 13" % (sT0, sG))
    a("s_add_u32 s%d, s%d, 0x%x" % (sT0, sT0, WS_Q))
    a("s_lshl_b32 s%d, s%d, 10" % (sT1, sMM))
    a("s_add_u32 s%d, s%d, s%d" % (sT1, sT1, sT0))
    if qsync == "bar":
        a("s_cmp_eq_u32 s%d, 6" % sW)
        a("s_cselect_b32 s%d, s%d, 0x%x" % (sT1, sT1, OOB))
    a("v_lshlrev_b32 v%d, 3, v%d" % (vt0, vg))
    a("v_lshl_add_u32 v%d, v%d, 1, v%d" % (vt0, vbank, vt0))
    a("v_add_u32 v%d, v%d, v%d" % (vt0, vt0, ve))
    a("v_lshlrev_b32 v%d, 4, v%d" % (vt0, vt0))
    a("v_lshl_add_u32 v%d, v%d, 9, v%d" % (vt0, vhb, vt0))
    a("v_add_u32 v%d, s%d, v%d" % (vQP, sT1, vt0))
    a("s_lshr_b32 s%d, s%d, 2" % (sT1, sMM))
    a("s_lshl_b32 s%d, s%d, 9" % (sT1, sT1))
    a("s_add_u32 s%d, s%d, s%d" % (sT1, sT1, sT0))
    a("s_cmp_eq_u32 s%d, %d" % (sW, QGW))
    a("s_cselect_b32 s%d, s%d, 0x%x" % (sT1, sT1, OOB))
    a("v_lshrrev_b32 v%d, 5, v%d" % (vt0, vL))
    a("v_lshlrev_b32 v%d, 12, v%d" % (vt1, vt0))
    a("v_and_b32 v%d, 31, v%d" % (vQG, vL))
    a("v_lshl_add_u32 v%d, v%d, 4, v%d" % (vt1, vQG, vt1))
    a("v_add_u32 v%d, s%d, v%d" % (vQG, sT1, vt1))
    a("v_lshlrev_b32 v%d, 8, v%d" % (vt0, vt0))
    a("v_bfe_u32 v%d, v%d, 3, 2" % (vt1, vL))
    a("v_lshl_add_u32 v%d, v%d, 6, v%d" % (vt0, vt1, vt0))
    a("v_and_b32 v%d, 7, v%d" % (vt1, vL))
    a("v_lshl_add_u32 v%d, v%d, 1, v%d" % (vQBw, vt1, vt0))
    a("v_lshlrev_b32 v%d, 8, v%d" % (vt0, vhb))
    a("v_lshrrev_b32 v%d, 2, v%d" % (vt1, vL))
    a("v_lshl_add_u32 v%d, v%d, 4, v%d" % (vQBr, vt1, vt0))
    a("v_lshlrev_b32 v%d, 5, v%d" % (vMXr, vhb))
    a("s_lshl_b32 s%d, s%d, 2" % (sT0, sW))
    a("v_add_u32 v%d, s%d, v%d" % (vMXw, sT0, vMXr))
    a("s_lshl_b32 s%d, s%d, 3" % (sRP, sKVH))
    a("s_add_u32 s%d, s%d, s%d" % (sRP, sRP, sMM))
    a("s_mul_i32 s%d, s%d, %d" % (sT0, sRP, 32 * 1152))
    a("s_lshl_b32 s%d, s%d, 12" % (sT1, sW))
    a("s_add_u32 s%d, s%d, s%d" % (sT1, sT1, sT0))
    a("v_add_u32 v%d, s%d, v%d" % (vWOoff, sT1, vLA))
    a("s_lshl_b32 s%d, s%d, 10" % (sT1, sW))
    a("v_add_u32 v%d, s%d, v%d" % (vA1, sT1, vLA))
    a("s_and_b32 s%d, s%d, 1" % (sH, sW))
    a("v_lshlrev_b32 v%d, 4, v%d" % (vt0, vg))
    a("v_lshl_add_u32 v%d, v%d, 3, v%d" % (vt0, ve, vt0))
    a("v_bfe_u32 v%d, v%d, 3, 1" % (vt1, vL))
    a("v_lshl_add_u32 v%d, v%d, 2, v%d" % (vt0, vt1, vt0))
    a("v_bfe_u32 v%d, v%d, 2, 1" % (vt1, vL))
    a("v_add_u32 v%d, v%d, v%d" % (vt0, vt0, vt1))
    a("s_lshl_b32 s%d, s%d, 1" % (sT1, sH))
    a("v_add_u32 v%d, s%d, v%d" % (vt0, sT1, vt0))
    a("v_lshlrev_b32 v%d, 4, v%d" % (vt0, vt0))
    a("v_lshl_add_u32 v%d, v%d, 3, v%d" % (vPubR, vhb, vt0))
    a("s_lshl_b32 s%d, s%d, 5" % (sT1, sH))
    a("v_mov_b32 v%d, s%d" % (vPubH, sT1))
    a("s_lshl_b32 s%d, s%d, 14" % (sT0, sG))
    a("s_add_u32 s%d, s%d, 0x%x" % (sT0, sT0, WS_A))
    a("s_lshl_b32 s%d, s%d, 11" % (sT1, sMM))
    a("s_add_u32 s%d, s%d, s%d" % (sT1, sT1, sT0))
    a("s_lshl_b32 s%d, s%d, 10" % (sT2, sH))
    a("s_add_u32 s%d, s%d, s%d" % (sT1, sT1, sT2))
    a("v_add_u32 v%d, s%d, v%d" % (vPubW, sT1, vLA))
    a("s_lshl_b32 s%d, s%d, 8" % (sT1, sMM))
    a("s_add_u32 s%d, s%d, s%d" % (sT1, sT1, sT0))
    a("v_lshl_add_u32 v%d, v%d, 2, v%d" % (vt0, vhb, ve))
    a("v_lshlrev_b32 v%d, 11, v%d" % (vt0, vt0))
    a("v_lshrrev_b32 v%d, 2, v%d" % (vt1, vL))
    a("v_lshl_add_u32 v%d, v%d, 4, v%d" % (vt0, vt1, vt0))
    a("v_add_u32 v%d, s%d, v%d" % (vGA, sT1, vt0))
    a("v_lshlrev_b32 v%d, 3, v%d" % (vPB, vL))
    a("s_lshl_b32 s%d, s%d, 7" % (sT2, sBETA))
    a("s_add_u32 s%d, s%d, s%d" % (sT0, sT2, sRP))
    a("s_mul_i32 s%d, s%d, %d" % (sT0, sT0, BSTRIDE))
    a("s_add_u32 s%d, s%d, 0x%x" % (sT0, sT0, WS_B))
    a("v_add_u32 v%d, s%d, v%d" % (vBP, sT0, vA1))
    a("s_lshl_b32 s%d, s%d, 4" % (sRHO, sMM))
    a("s_add_u32 s%d, s%d, s%d" % (sRHO, sRHO, sKVH))
    a("s_lshl_b32 s%d, s%d, 4" % (sT1, sW))
    a("s_add_u32 s%d, s%d, s%d" % (sT0, sT2, sT1))
    a("s_mul_i32 s%d, s%d, %d" % (sT0, sT0, BSTRIDE))
    a("s_lshl_b32 s%d, s%d, 6" % (sT1, sRHO))
    a("s_add_u32 s%d, s%d, s%d" % (sT0, sT0, sT1))
    a("s_add_u32 s%d, s%d, 0x%x" % (sT0, sT0, WS_B))
    a("v_lshrrev_b32 v%d, 2, v%d" % (vt0, vL))
    a("v_mul_u32_u24 v%d, %d, v%d" % (vt0, BSTRIDE, vt0))
    a("v_and_b32 v%d, 3, v%d" % (vt1, vL))
    a("v_lshl_add_u32 v%d, v%d, 4, v%d" % (vt0, vt1, vt0))
    a("v_add_u32 v%d, s%d, v%d" % (vBG, sT0, vt0))
    a("v_lshl_add_u32 v%d, v%d, 2, v%d" % (vt1, vg, vt1))
    a("v_lshlrev_b32 v%d, 2, v%d" % (vt1, vt1))
    a("s_lshl_b32 s%d, s%d, 6" % (sT1, sW))
    a("v_add_u32 v%d, s%d, v%d" % (vFw, sT1, vt1))
    a("v_lshl_add_u32 v%d, v%d, 6, v%d" % (vFr, vbank, vt1))
    a("s_lshr_b32 s%d, s%d, 4" % (sT0, sRHO))
    a("s_lshl_b32 s%d, s%d, 7" % (sT0, sT0))
    a("s_bfe_u32 s%d, s%d, 0x20002" % (sT1, sRHO))
    a("s_lshl_b32 s%d, s%d, 5" % (sT1, sT1))
    a("s_add_u32 s%d, s%d, s%d" % (sT0, sT0, sT1))
    a("s_and_b32 s%d, s%d, 3" % (sT1, sRHO))
    a("s_lshl_b32 s%d, s%d, 1" % (sT1, sT1))
    a("s_add_u32 s%d, s%d, s%d" % (sT0, sT0, sT1))
    a("s_mul_i32 s%d, s%d, 576" % (sT1, sBETA))
    a("s_add_u32 s%d, s%d, s%d" % (sT0, sT0, sT1))
    a("v_bfe_u32 v%d, v%d, 4, 1" % (vt0, vL))
    a("v_lshlrev_b32 v%d, 4, v%d" % (vt0, vt0))
    a("v_lshrrev_b32 v%d, 5, v%d" % (vt1, vL))
    a("v_lshl_add_u32 v%d, v%d, 3, v%d" % (vt0, vt1, vt0))
    a("v_mul_u32_u24 v%d, 1152, v%d" % (vt1, vhb))
    a("v_add3_u32 v%d, v%d, v%d, v%d" % (vt0, vt0, vt1, ve))
    a("v_add_u32 v%d, s%d, v%d" % (vt0, sT0, vt0))
    a("v_lshlrev_b32 v%d, 1, v%d" % (vt0, vt0))
    a("v_cmp_eq_u32 vcc, 0, v%d" % vbank)
    a("v_cndmask_b32 v%d, v%d, v%d, vcc" % (vOut, vt2, vt0))
    a("s_lshl_b32 s%d, s%d, 8" % (sT0, sBETA))
    a("v_mov_b32 v%d, s%d" % (vt0, sT0))
    a("v_cmp_eq_u32 vcc, 0, v%d" % vL)
    a("v_cndmask_b32 v%d, v%d, v%d, vcc" % (vEp, vt2, vt0))
    a("v_mul_u32_u24 v%d, 1152, v%d" % (vt0, vg))
    a("v_lshl_add_u32 v%d, v%d, 4, v%d" % (vt0, vn, vt0))
    a("s_lshl_b32 s%d, s%d, 8" % (sT1, sW))
    a("v_add_u32 v%d, s%d, v%d" % (vF, sT1, vt0))
    a("s_getreg_b32 s%d, hwreg(HW_REG_XCC_ID, 0, 3)" % sT3)
    a("s_waitcnt lgkmcnt(0)")
    a("s_add_u32 s%d, s%d, 1" % (sTAG, sEP))
    a("s_and_b32 s%d, s%d, 0xfff" % (sTAG, sTAG))
    a("v_mov_b32 v%d, s%d" % (vTAG, sTAG))
    a("s_and_b32 s%d, s%d, 0x1ff" % (sT0, sTAG))
    a("s_lshl_b32 s%d, s%d, 9" % (sT3, sT3))
    a("s_or_b32 s%d, s%d, s%d" % (sT0, sT0, sT3))
    a("v_mov_b32 v%d, s%d" % (vTAGQ, sT0))
    a("s_barrier")

    def build_oh(dst, src, u):
        for r in range(4):
            a("v_mov_b32_dpp v%d, v%d %s row_mask:0xf bank_mask:0x%x" % (dst + r, src, ror(r, u), 1 << r))
    vm.wait("x1")
    stamp("wq0")
    pace("wq4", WK)
    a("v_lshlrev_b32 v%d, v%d, v%d" % (vX0, vE16, vX0))
    a("v_lshlrev_b32 v%d, v%d, v%d" % (vX1, vE16, vX1))
    build_oh(vOH[0], vX0, 0)
    for i in range(5):
        oh = vOH[i & 1]
        if i < 4: build_oh(vOH[(i + 1) & 1], vX0 if i + 1 < 4 else vX1, (i + 1) & 3)
        a("v_mfma_f32_16x16x32_bf16 %s, %s, %s, %s" % (vr(vACC), vr(vVR + 4 * i), vr(oh), "0" if i == 0 else vr(vACC)))
    a("v_mov_b32 v%d, v%d" % (vWOr, vF))
    a("s_mul_i32 s%d, s%d, %d" % (sT0, sRP, 32 * 1152))
    a("s_lshl_b32 s%d, s%d, 10" % (sT1, sW))
    a("s_add_u32 s%d, s%d, s%d" % (sT0, sT0, sT1))
    a("s_add_u32 s%d, s%d, 32768" % (sT0, sT0))
    a("s_add_u32 s%d, s%d, %d" % (sM0B, sT1, L_WO + 32768))
    a("s_cmp_lt_u32 s%d, 4" % sW)
    a("s_cselect_b32 s%d, s%d, 0x%x" % (sT0, sT0, OOB))
    a("s_cselect_b32 s%d, s%d, %d" % (sM0B, sM0B, L_DUMMY))
    a("v_add_u32 v%d, s%d, v%d" % (vWO5, sT0, vLA))
    a("s_lshl_b32 s%d, s%d, 12" % (sM0A, sW))
    a("s_add_u32 s%d, s%d, %d" % (sM0A, sM0A, L_WO))
    stamp("wq4")
    a("ds_write_b128 v%d, %s offset:%d" % (vA1, vr(vACC), L_RED1))
    a("s_waitcnt lgkmcnt(0)")
    def tree_add(bases, n):
        cur = list(bases)
        while len(cur) > 1:
            nxt = []
            for k in range(0, len(cur) - 1, 2):
                for j in range(0, n, 2):
                    a("v_pk_add_f32 %s, %s, %s" % (vr(cur[k] + j, 2), vr(cur[k] + j, 2), vr(cur[k + 1] + j, 2)))
                nxt.append(cur[k])
            if len(cur) & 1: nxt.append(cur[-1])
            cur = nxt
    if qsync == "bar":
        a("s_barrier")
        a("s_cmp_lg_u32 s%d, 6" % sW)
        a("s_cbranch_scc1 L_noqred")
    else:
        a("v_mov_b32 v%d, 1" % vT)
        a("s_mov_b64 exec, 1")
        a("ds_add_rtn_u32 v%d, v%d, v%d offset:%d" % (vT + 1, vZERO, vT, L_CNT))
        a("s_mov_b64 exec, -1")
        a("s_waitcnt lgkmcnt(0)")
        a("v_readfirstlane_b32 s%d, v%d" % (sT0, vT + 1))
        a("s_cmp_eq_u32 s%d, 7" % sT0)
        a("s_cselect_b32 s%d, 0, 0x%x" % (sT1, OOB))
        a("v_add_u32 v%d, s%d, v%d" % (vQP, sT1, vQP))
        a("s_cbranch_scc0 L_noqred")
    for w in range(8):
        a("ds_read_b128 %s, v%d offset:%d" % (vr(vR + 4 * w), vLA, L_RED1 + 1024 * w))
    a("s_waitcnt lgkmcnt(0)")
    tree_add([vR + 4 * w for w in range(8)], 4)
    for r in range(4):
        a("v_and_or_b32 v%d, v%d, s%d, v%d" % (vR + r, vR + r, sMASK, vTAGQ))
    a.label("L_noqred")
    vm.issue("qpub", "buffer_store_dwordx4 %s, v%d, %s, 0 offen %s" % (vr(vR), vQP, srd(sWS), cflags))
    stamp("qpub")

    def q_finish():
        a("s_cmp_lg_u32 s%d, %d" % (sW, QGW))
        a("s_cbranch_scc1 L_noqg")
        a("s_mov_b32 s%d, %d" % (sCNT, limit))
        assert all(vm.done("qg%d" % q) for q in range(4)), "gather must have landed"
        a.label("L_qchk")
        for k in range(16): a("v_xor_b32 v%d, v%d, v%d" % (vG + k, vTAGQ, vG + k))
        a("v_or3_b32 v%d, v%d, v%d, v%d" % (vT, vG, vG + 1, vG + 2))
        for k in range(3, 15, 2): a("v_or3_b32 v%d, v%d, v%d, v%d" % (vT, vT, vG + k, vG + k + 1))
        a("v_or_b32 v%d, v%d, v%d" % (vT, vT, vG + 15))
        a("v_and_b32 v%d, 0x1ff, v%d" % (vT + 1, vT))
        a("v_cmp_ne_u32 vcc, 0, v%d" % (vT + 1))
        a("s_cbranch_vccz L_qok")
        a("s_sub_u32 s%d, s%d, 1" % (sCNT, sCNT))
        a("s_cbranch_scc1 L_qok")
        for qq in range(4):
            a("buffer_load_dwordx4 %s, v%d, %s, 0 offen offset:%d %s" % (vr(vG + 4 * qq), vQG, srd(sWS), 1024 * qq, cflags))
        a("s_waitcnt vmcnt(0)")
        a("s_branch L_qchk")
        a.label("L_qok")
        stamp_val("qretry", sCNT)
        a("v_and_b32 v%d, 0xe00, v%d" % (vT + 1, vT))
        a("v_cmp_ne_u32 vcc, 0, v%d" % (vT + 1))
        tree_add([vG + 4 * q for q in range(4)], 4)
        a("s_cmp_eq_u64 vcc, 0")
        a("s_cselect_b32 s%d, %d, 1" % (sT0, 3 if fast else 1))
        a("v_mov_b32 v%d, s%d" % (vT + 4, sT0))
        a("v_cvt_pk_bf16_f32 v%d, v%d, v%d" % (vT + 2, vG, vG + 1))
        a("v_cvt_pk_bf16_f32 v%d, v%d, v%d" % (vT + 3, vG + 2, vG + 3))
        a("ds_write_b16 v%d, v%d offset:%d" % (vQBw, vT + 2, L_QB))
        a("ds_write_b16_d16_hi v%d, v%d offset:%d" % (vQBw, vT + 2, L_QB + 16))
        a("ds_write_b16 v%d, v%d offset:%d" % (vQBw, vT + 3, L_QB + 32))
        a("ds_write_b16_d16_hi v%d, v%d offset:%d" % (vQBw, vT + 3, L_QB + 48))
        a("s_waitcnt lgkmcnt(0)")
        a("ds_write_b32 v%d, v%d offset:%d" % (vZERO, vT + 4, L_FLAG))
        a.label("L_noqg")
    qdone = False
    for i in range(16):
        vm.wait("K%d" % i)
        pace("K%d" % i, WK)
        if i == GK:
            for qq in range(4):
                vm.issue("qg%d" % qq, "buffer_load_dwordx4 %s, v%d, %s, 0 offen offset:%d %s" % (vr(vG + 4 * qq), vQG, srd(sWS), 1024 * qq, cflags))
        elif i > GK and not qdone and all(vm.done("qg%d" % q) for q in range(4)):
            q_finish(); qdone = True
    assert qdone
    stamp("K15")
    pace("K15", WK + XB)
    a.label("L_qwait")
    a("ds_read_b32 v%d, v%d offset:%d" % (vT, vZERO, L_FLAG))
    a("ds_read_b128 %s, v%d offset:%d" % (vr(vQB), vQBr, L_QB))
    a("s_waitcnt lgkmcnt(0)")
    a("v_readfirstlane_b32 s%d, v%d" % (sFLAG, vT))
    a("s_cmp_eq_u32 s%d, 0" % sFLAG)
    a("s_cbranch_scc1 L_qwait")
    stamp("qready")

    def qk_mfma(t):
        for u in range(4):
            k = vKR + 4 * (4 * t + u)
            a("v_mfma_f32_16x16x32_bf16 %s, %s, %s, 0" % (vr(k), vr(k), vr(vQB)))
    def qk_dpp(t):
        for r in range(4):
            for u in range(4):
                k = vKR + 4 * (4 * t + u) + r
                if r == 0:
                    a("v_mov_b32_dpp v%d, v%d %s row_mask:0xf bank_mask:0x%x" % (vS + t, k, ror(u, r), 1 << u))
                else:
                    a("v_add_f32_dpp v%d, v%d, v%d %s row_mask:0xf bank_mask:0x%x" % (vS + t, k, vS + t, ror(u, r), 1 << u))
    qk_mfma(0); qk_mfma(1); qk_dpp(0); qk_mfma(2); qk_dpp(1); qk_mfma(3); qk_dpp(2); qk_dpp(3)
    def rowreduce(op, v, tmp):
        a("v_mov_b32 v%d, v%d" % (tmp, v))
        a("v_permlane16_swap_b32 v%d, v%d" % (v, tmp))
        a("%s v%d, v%d, v%d" % (op, v, v, tmp))
        a("v_mov_b32 v%d, v%d" % (tmp, v))
        a("v_permlane32_swap_b32 v%d, v%d" % (v, tmp))
        a("%s v%d, v%d, v%d" % (op, v, v, tmp))
    def bankreduce(op, v):
        a("%s_dpp v%d, v%d, v%d row_ror:4 row_mask:0xf bank_mask:0xf" % (op, v, v, v))
        a("%s_dpp v%d, v%d, v%d row_ror:8 row_mask:0xf bank_mask:0xf" % (op, v, v, v))
    a("v_max3_f32 v%d, v%d, v%d, v%d" % (vM, vS, vS + 1, vS + 2))
    a("v_max_f32 v%d, v%d, v%d" % (vM, vM, vS + 3))
    bankreduce("v_max_f32", vM)
    rowreduce("v_max_f32", vM, vT + 1)
    a("v_mul_f32 v%d, s%d, v%d" % (vM, sC, vM))
    a("v_and_b32 v%d, s%d, v%d" % (vM, sMASK, vM))
    for t in range(4): a("v_fma_f32 v%d, v%d, s%d, -v%d" % (vS + t, vS + t, sC, vM))
    a("ds_write_b32 v%d, v%d offset:%d" % (vMXw, vM, L_MX))
    for t in range(4): a("v_exp_f32 v%d, v%d" % (vS + t, vS + t))
    a("v_add_f32 v%d, v%d, v%d" % (vLSUM, vS, vS + 1))
    a("v_add_f32 v%d, v%d, v%d" % (vT + 1, vS + 2, vS + 3))
    for t in range(4):
        a("v_cvt_pk_bf16_f32 v%d, v%d, v%d" % (vS + t, vS + t, vS + t))
    a("v_add_f32 v%d, v%d, v%d" % (vLSUM, vLSUM, vT + 1))
    for t in range(4):
        a("v_and_b32 v%d, v%d, v%d" % (vS + t, vEM, vS + t))
    stamp("soft")

    build_oh(vOH[0], vS, 0)
    for i in range(16):
        oh = vOH[i & 1]
        if i == WOP:
            for t in range(nbefore):
                if idx_of["V%d" % i] >= pos[0] or pos[0] < len(seq):
                    if not vm.done("wo%d" % t) and idx_of["wo%d" % t] < pos[0]:
                        vm.wait("wo%d" % t)
                        pace("wo%d" % t, WV if i - 1 < BS else 64)
        vm.wait("V%d" % i)
        if i == 15: stamp("V15")
        a("v_mfma_f32_16x16x32_bf16 %s, %s, %s, %s" % (vr(vACC), vr(vVR + 4 * i), vr(oh), "0" if i == 0 else vr(vACC)))
        if i < 15:
            pace("V%d" % i, WV if i < BS else 64)
            build_oh(vOH[(i + 1) & 1], vS + ((i + 1) >> 2), (i + 1) & 3)
        if i == 1:
            bankreduce("v_add_f32", vLSUM)
            rowreduce("v_add_f32", vLSUM, vT + 1)
        if i == BS:
            a("s_waitcnt lgkmcnt(0)")
            a("s_barrier")
            a("ds_read_b128 %s, v%d offset:%d" % (vr(vT), vMXr, L_MX))
            a("ds_read_b128 %s, v%d offset:%d" % (vr(vT + 4), vMXr, L_MX + 16))
            a("s_waitcnt lgkmcnt(0)")
            b = vT
            a("v_max3_f32 v%d, v%d, v%d, v%d" % (b, b, b + 1, b + 2))
            a("v_max3_f32 v%d, v%d, v%d, v%d" % (b + 3, b + 3, b + 4, b + 5))
            a("v_max3_f32 v%d, v%d, v%d, v%d" % (b, b, b + 6, b + 7))
            a("v_max_f32 v%d, v%d, v%d" % (b, b, b + 3))
            a("v_sub_f32 v%d, v%d, v%d" % (vF, vM, b))
            a("v_exp_f32 v%d, v%d" % (vF, vF))
            a("v_mov_b32_dpp v%d, v%d quad_perm:[0,0,0,0] row_mask:0xf bank_mask:0xf" % (vPM, b))
            a("v_mov_b32_dpp v%d, v%d quad_perm:[2,2,2,2] row_mask:0xf bank_mask:0xf" % (b + 2, b))
            a("v_mul_f32 v%d, v%d, v%d" % (vLSUM, vF, vLSUM))
            a("s_cmp_eq_u32 s%d, 1" % sH)
            a("s_cselect_b64 vcc, -1, 0")
            a("ds_write_b32 v%d, v%d offset:%d" % (vMXw, vLSUM, L_LS))
            a("v_cndmask_b32 v%d, v%d, v%d, vcc" % (vPM, vPM, b + 2))
            a("v_or_b32 v%d, v%d, v%d" % (vPM, vTAG, vPM))
    assert pos[0] == len(seq)
    for r in range(4):
        a("v_mul_f32 v%d, v%d, v%d" % (vACC + r, vF, vACC + r))
    a("ds_write_b128 v%d, %s offset:%d" % (vA1, vr(vACC), L_RED2))
    a("s_waitcnt lgkmcnt(0)")
    a("s_barrier")
    stamp("barA")
    a("s_cmp_lt_u32 s%d, 6" % sW)
    a("s_cbranch_scc1 L_nopub")
    for w in range(8):
        a("ds_read_b64 %s, v%d offset:%d" % (vr(vR + 2 * w, 2), vPubR, L_RED2 + 1024 * w))
    a("ds_read_b128 %s, v%d offset:%d" % (vr(vT + 4), vPubH, L_LS))
    a("ds_read_b128 %s, v%d offset:%d" % (vr(vT + 8), vPubH, L_LS + 16))
    a("s_waitcnt lgkmcnt(2)")
    tree_add([vR + 2 * w for w in range(8)], 2)
    a("s_waitcnt lgkmcnt(0)")
    a("v_pk_add_f32 %s, %s, %s" % (vr(vT + 4, 2), vr(vT + 4, 2), vr(vT + 8, 2)))
    a("v_pk_add_f32 %s, %s, %s" % (vr(vT + 6, 2), vr(vT + 6, 2), vr(vT + 10, 2)))
    a("v_and_or_b32 v%d, v%d, s%d, v%d" % (vT, vR, sMASK, vTAG))
    a("v_pk_add_f32 %s, %s, %s" % (vr(vT + 4, 2), vr(vT + 4, 2), vr(vT + 6, 2)))
    a("v_and_or_b32 v%d, v%d, s%d, v%d" % (vT + 1, vR + 1, sMASK, vTAG))
    a("v_mov_b32 v%d, v%d" % (vT + 2, vPM))
    a("v_add_f32 v%d, v%d, v%d" % (vT + 4, vT + 4, vT + 5))
    a("v_and_or_b32 v%d, v%d, s%d, v%d" % (vT + 3, vT + 4, sMASK, vTAG))
    a("s_cmp_eq_u32 s%d, 3" % sFLAG)
    a("s_cbranch_scc1 L_pubfast")
    a("buffer_store_dwordx4 %s, v%d, %s, 0 offen %s" % (vr(vT), vPubW, srd(sWS), cflags))
    a("s_branch L_pubdone")
    a.label("L_pubfast")
    a("buffer_store_dwordx4 %s, v%d, %s, 0 offen" % (vr(vT), vPubW, srd(sWS)))
    a.label("L_pubdone")
    stamp("apub")
    a("s_waitcnt vmcnt(1)")
    a("s_branch L_barA2")
    a.label("L_nopub")
    a("s_waitcnt vmcnt(0)")
    a.label("L_barA2")
    a("s_barrier")
    a("s_cmp_eq_u32 s%d, 5" % sW)
    a("s_cbranch_scc1 L_gatherA")
    a("s_cmp_gt_u32 s%d, 5" % sW)
    a("s_cbranch_scc1 L_barB")
    for i in range(8):
        a("ds_read_b128 %s, v%d offset:%d" % (vr(vKR + 4 * i), vWOr, L_WO + WOROW[i] * 1152))
    a("s_branch L_barB")
    a.label("L_gatherA")
    a("s_mov_b32 s%d, %d" % (sCNT, limit))
    a("s_movk_i32 s%d, 0x1000" % sOFF)
    a.label("L_pollA")
    a("buffer_load_dwordx4 %s, v%d, %s, 0 offen %s" % (vr(vG), vGA, srd(sWS), cflags))
    a("buffer_load_dwordx4 %s, v%d, %s, s%d offen %s" % (vr(vG + 4), vGA, srd(sWS), sOFF, cflags))
    a("s_waitcnt vmcnt(0)")
    for k in range(8): a("v_xor_b32 v%d, v%d, v%d" % (vG + k, vTAG, vG + k))
    a("v_or3_b32 v%d, v%d, v%d, v%d" % (vT, vG, vG + 1, vG + 2))
    a("v_or3_b32 v%d, v%d, v%d, v%d" % (vT + 1, vG + 3, vG + 4, vG + 5))
    a("v_or3_b32 v%d, v%d, v%d, v%d" % (vT, vT, vG + 6, vG + 7))
    a("v_or_b32 v%d, v%d, v%d" % (vT, vT, vT + 1))
    a("v_and_b32 v%d, 0xfff, v%d" % (vT, vT))
    a("v_cmp_ne_u32 vcc, 0, v%d" % vT)
    a("s_cbranch_vccz L_okA")
    a("s_sub_u32 s%d, s%d, 1" % (sCNT, sCNT))
    a("s_cbranch_scc0 L_pollA")
    a.label("L_okA")
    stamp("agot")
    o00, o01, m0, l0, o10, o11, m1, l1 = [vG + k for k in range(8)]
    X1 = "quad_perm:[1,0,3,2] row_mask:0xf bank_mask:0xf"
    a("v_max_f32 v%d, v%d, v%d" % (vT, m0, m1))
    a("v_max_f32_dpp v%d, v%d, v%d %s" % (vT, vT, vT, X1))
    a("v_sub_f32 v%d, v%d, v%d" % (m0, m0, vT))
    a("v_sub_f32 v%d, v%d, v%d" % (m1, m1, vT))
    a("v_exp_f32 v%d, v%d" % (m0, m0))
    a("v_exp_f32 v%d, v%d" % (m1, m1))
    a("v_mul_f32 v%d, v%d, v%d" % (l0, m0, l0))
    a("v_mul_f32 v%d, v%d, v%d" % (o00, m0, o00))
    a("v_mul_f32 v%d, v%d, v%d" % (o01, m0, o01))
    a("v_fmac_f32 v%d, v%d, v%d" % (l0, m1, l1))
    a("v_fmac_f32 v%d, v%d, v%d" % (o00, m1, o10))
    a("v_fmac_f32 v%d, v%d, v%d" % (o01, m1, o11))
    a("v_add_f32_dpp v%d, v%d, v%d %s" % (l0, l0, l0, X1))
    a("v_add_f32_dpp v%d, v%d, v%d %s" % (o00, o00, o00, X1))
    a("v_add_f32_dpp v%d, v%d, v%d %s" % (o01, o01, o01, X1))
    a("v_rcp_f32 v%d, v%d" % (l0, l0))
    a("v_mul_f32 v%d, v%d, v%d" % (o00, l0, o00))
    a("v_mul_f32 v%d, v%d, v%d" % (o01, l0, o01))
    a("v_cvt_pk_bf16_f32 v%d, v%d, v%d" % (vT, o00, o00))
    a("v_cvt_pk_bf16_f32 v%d, v%d, v%d" % (vT + 1, o01, o01))
    a("v_and_b32 v%d, v%d, v%d" % (vT, vEM, vT))
    a("v_and_b32 v%d, v%d, v%d" % (vT + 1, vEM, vT + 1))
    a("ds_write_b64 v%d, %s offset:%d" % (vPB, vr(vT, 2), L_PB))
    a("s_waitcnt lgkmcnt(0)")
    stamp_val("apolls", sCNT)
    a.label("L_barB")
    a("s_barrier")
    stamp("barB")
    a("s_cmp_ge_u32 s%d, 5" % sW)
    a("s_cbranch_scc1 L_phase4")
    a("ds_read_b64 %s, v%d offset:%d" % (vr(vS, 2), vPB, L_PB))
    a("s_waitcnt lgkmcnt(0)")
    stamp("wo")
    build_oh(vOH[0], vS, 0)
    for i in range(8):
        oh = vOH[i & 1]
        if i < 7: build_oh(vOH[(i + 1) & 1], vS + ((i + 1) >> 2), (i + 1) & 3)
        a("v_mfma_f32_16x16x32_bf16 %s, %s, %s, %s" % (vr(vACC), vr(vKR + 4 * i), vr(oh), "0" if i == 0 else vr(vACC)))
    for r in range(4):
        a("v_and_or_b32 v%d, v%d, s%d, v%d" % (vT + r, vACC + r, sMASK, vTAG))
    a("buffer_store_dwordx4 %s, v%d, %s, 0 offen %s" % (vr(vT), vBP, srd(sWS), cflags))
    stamp("bpub")
    a.label("L_phase4")
    a("s_cmp_ge_u32 s%d, 72" % sRHO)
    a("s_cbranch_scc1 L_exit")
    a("s_mov_b32 s%d, %d" % (sCNT, limit))
    a.label("L_pollB")
    a("buffer_load_dwordx4 %s, v%d, %s, 0 offen %s" % (vr(vG), vBG, srd(sWS), cflags))
    a("s_waitcnt vmcnt(0)")
    for k in range(4): a("v_xor_b32 v%d, v%d, v%d" % (vG + k, vTAG, vG + k))
    a("v_or3_b32 v%d, v%d, v%d, v%d" % (vT + 4, vG, vG + 1, vG + 2))
    a("v_or_b32 v%d, v%d, v%d" % (vT + 4, vT + 4, vG + 3))
    a("v_and_b32 v%d, 0xfff, v%d" % (vT + 4, vT + 4))
    a("v_cmp_ne_u32 vcc, 0, v%d" % (vT + 4))
    a("s_cbranch_vccz L_okB")
    a("s_sub_u32 s%d, s%d, 1" % (sCNT, sCNT))
    a("s_cbranch_scc0 L_pollB")
    a.label("L_okB")
    stamp("bgot")
    a("v_permlane32_swap_b32 v%d, v%d" % (vG, vG + 1))
    a("v_permlane32_swap_b32 v%d, v%d" % (vG + 2, vG + 3))
    a("v_add_f32 v%d, v%d, v%d" % (vG, vG, vG + 1))
    a("v_add_f32 v%d, v%d, v%d" % (vG + 2, vG + 2, vG + 3))
    a("v_permlane16_swap_b32 v%d, v%d" % (vG, vG + 2))
    a("v_add_f32 v%d, v%d, v%d" % (vG, vG, vG + 2))
    bankreduce("v_add_f32", vG)
    a("ds_write_b32 v%d, v%d offset:%d" % (vFw, vG, L_FIN))
    a("s_waitcnt lgkmcnt(0)")
    stamp_val("bpolls", sCNT)
    a("s_barrier")
    a("s_cmp_lg_u32 s%d, 0" % sW)
    a("s_cbranch_scc1 L_exit")
    a("ds_read_b32 v%d, v%d offset:%d" % (vG, vFr, L_FIN))
    a("ds_read_b32 v%d, v%d offset:%d" % (vG + 1, vFr, L_FIN + 256))
    a("s_waitcnt lgkmcnt(0)")
    a("v_add_f32 v%d, v%d, v%d" % (vG, vG, vG + 1))
    bankreduce("v_add_f32", vG)
    a("v_cvt_pk_bf16_f32 v%d, v%d, v%d" % (vG, vG, vG))
    a("buffer_store_short v%d, v%d, %s, 0 offen %s" % (vG, vOut, srd(sOUT), outflags))
    a("s_cmp_lg_u32 s%d, 0" % sRHO)
    a("s_cbranch_scc1 L_exit")
    a("buffer_store_dword v%d, v%d, %s, 0 offen %s" % (vTAG, vEp, srd(sWS), cflags))
    a.label("L_exit")
    if stamps:
        stamp("end")
        a("s_cmp_eq_u32 s%d, 0" % sW); a("s_cbranch_scc0 L_st5")
        flush_stamps(0, ["start", "karg", "wq0", "wq4", "qpub", "K15", "qready", "soft", "V15", "barA", "barB", "wo", "bpub", "bgot", "end", "bpolls"])
        flush_stamps(21, ["qretry"])
        a("s_branch L_end")
        a.label("L_st5")
        a("s_cmp_eq_u32 s%d, 5" % sW); a("s_cbranch_scc0 L_st6")
        flush_stamps(16, ["agot", "barB", "bgot", "end", "apolls"])
        a("s_branch L_end")
        a.label("L_st6")
        a("s_cmp_eq_u32 s%d, 6" % sW); a("s_cbranch_scc0 L_st7")
        flush_stamps(24, ["qpub", "K15", "V15", "apub", "bgot", "end"])
        a("s_branch L_end")
        a.label("L_st7")
        a("s_cmp_eq_u32 s%d, 7" % sW); a("s_cbranch_scc0 L_end")
        flush_stamps(22, ["V15"])
    a.label("L_end")
    a("s_endpgm")
    a.raw("L_codeend:")
    a.raw('.section .rodata,"a"')
    a.raw(".p2align 6")
    a.raw(".amdhsa_kernel " + KN)
    a.raw("  .amdhsa_next_free_vgpr 256")
    a.raw("  .amdhsa_next_free_sgpr 102")
    a.raw("  .amdhsa_accum_offset 256")
    a.raw("  .amdhsa_group_segment_fixed_size 0")
    a.raw("  .amdhsa_kernarg_size 104")
    a.raw("  .amdhsa_user_sgpr_count 2")
    a.raw("  .amdhsa_user_sgpr_kernarg_segment_ptr 1")
    a.raw("  .amdhsa_system_sgpr_workgroup_id_x 1")
    a.raw(".end_amdhsa_kernel")
    return a.text(), a.nops

if __name__ == "__main__":
    import build, ast
    out = sys.argv[1]
    kw = {}
    for x in sys.argv[2:]:
        k, v = x.split("=", 1)
        try: kw[k] = ast.literal_eval(v)
        except Exception: kw[k] = v
    t, nops = gen(**kw)
    open(out, "w").write(t)
    print("nops inserted:", nops, "lines:", t.count("\n"))
    build.build(out)
```
